```python
import torch

def _softmax(x, axis=-1):
    return torch.softmax(x, dim=axis)
def _gelu(x):
    return torch.nn.functional.gelu(x, approximate="tanh")
def _silu(x):
    return torch.nn.functional.silu(x)
def _sigmoid(x):
    return torch.sigmoid(x)
def _layernorm(x, axis=-1, eps=1e-5):
    m = x.mean(dim=axis, keepdim=True)
    v = x.var(dim=axis, keepdim=True, unbiased=False)
    return (x - m) / torch.sqrt(v + eps)
def _scatter_add(tgt, idx, src, axis=0):
    return tgt.clone().index_add_(axis, idx, src)
def _segment_sum(src, seg, n):
    out = torch.zeros((n,) + src.shape[1:], dtype=src.dtype)
    return out.index_add_(0, seg, src)
def _pad(x, pw):
    flat = tuple(v for pair in reversed(pw) for v in pair)
    return torch.nn.functional.pad(x, flat)

kernel_name = 'interleave_layers__linear_kernel_hedgehog__glu_gated_glu__prompt'

def setup_inputs():

    _w = (lambda a: (lambda t: t.to(torch.bfloat16) if t.is_floating_point() else t)(torch.as_tensor(a)))
    def _A_setup():
        B, S, D, H = 1, 2048, 512, 32
        Dh = D // H
        return {
            "x": _w((lambda *s: torch.randn(*s, dtype=torch.bfloat16) * 0.05)(B, S, D)),
            "wqkv": _w((lambda *s: torch.randn(*s, dtype=torch.bfloat16) * 0.4)(D, 3 * D)),
            "w_phi": _w((lambda *s: torch.randn(*s, dtype=torch.bfloat16) * 0.4)(H, Dh, Dh) * (Dh ** -0.5)),
            "wo": _w((lambda *s: torch.randn(*s, dtype=torch.bfloat16) * 0.05)(D, D)),
        }
    _A_in = _A_setup()

    def _B_setup():
        B, S, D, F = 1, 2048, 512, 1792
        return {
            "x": _w((lambda *s: torch.randn(*s, dtype=torch.bfloat16) * 0.05)(B, S, D)),
            "w_gate": _w((lambda *s: torch.randn(*s, dtype=torch.bfloat16) * 0.05)(D, F)),
            "w_up": _w((lambda *s: torch.randn(*s, dtype=torch.bfloat16) * 0.05)(D, F)),
            "w_down": _w((lambda *s: torch.randn(*s, dtype=torch.bfloat16) * 0.05)(F, D)),
        }
    _B_in = _B_setup()

    return {
        "A_x": _A_in["x"],
        "A_wqkv": _A_in["wqkv"],
        "A_w_phi": _A_in["w_phi"],
        "A_wo": _A_in["wo"],
        "B_x": _B_in["x"],
        "B_w_gate": _B_in["w_gate"],
        "B_w_up": _B_in["w_up"],
        "B_w_down": _B_in["w_down"],
    }

def reference(A_x, A_wqkv, A_w_phi, A_wo, B_x, B_w_gate, B_w_up, B_w_down):
    def _A_ref(x, wqkv, w_phi, wo):
        B, S, D = x.shape
        H = 32; Dh = D // H
        qkv = (lambda x, *d: x.permute(*d))((x @ wqkv).reshape(B, S, 3, H, Dh), 2, 0, 3, 1, 4)
        q, k, v = qkv[0], qkv[1], qkv[2]
        pq = torch.einsum("bhsd,hdf->bhsf", q, w_phi)
        pk = torch.einsum("bhsd,hdf->bhsf", k, w_phi)
        phi_q = torch.concatenate([_softmax(pq, axis=-1), _softmax(-pq, axis=-1)], axis=-1)
        phi_k = torch.concatenate([_softmax(pk, axis=-1), _softmax(-pk, axis=-1)], axis=-1)
        kv = torch.einsum("bhsf,bhsd->bhfd", phi_k, v)
        z  = torch.einsum("bhsf->bhf", phi_k)
        num = torch.einsum("bhqf,bhfd->bhqd", phi_q, kv)
        den = torch.einsum("bhqf,bhf->bhq", phi_q, z)[..., None] + 1e-6
        o = num / den
        return (lambda x, *d: x.permute(*d))(o, 0, 2, 1, 3).reshape(B, S, D) @ wo

    def _B_ref(x, w_gate, w_up, w_down):
        g = torch.einsum("bsd,df->bsf", x, w_gate)
        u = torch.einsum("bsd,df->bsf", x, w_up)
        h = _sigmoid(g) * u
        return torch.einsum("bsf,fd->bsd", h, w_down)

    x = A_x
    x = x + _A_ref(_layernorm(x, axis=-1), A_wqkv, A_w_phi, A_wo)
    x = x + _B_ref(_layernorm(x, axis=-1), B_w_gate, B_w_up, B_w_down)
    x = x + _A_ref(_layernorm(x, axis=-1), A_wqkv, A_w_phi, A_wo)
    x = x + _B_ref(_layernorm(x, axis=-1), B_w_gate, B_w_up, B_w_down)
    return x
```

```python
import re

REG_RE = re.compile(r'^(-|\|)?(?:abs\()?([vas])(?:(\d+)|\[(\d+):(\d+)\])\)?\|?$')
def parse_reg(tok):
    tok = tok.strip()
    if tok == 'vcc': return [('s', 'vcc')]
    if tok == 'exec': return [('s', 'exec')]
    if tok == 'm0': return [('s', 'm0')]
    m = REG_RE.match(tok)
    if not m: return None
    c = m.group(2)
    if m.group(3) is not None: return [(c, int(m.group(3)))]
    return [(c, i) for i in range(int(m.group(4)), int(m.group(5)) + 1)]

TRANS = ('v_exp_f32', 'v_log_f32', 'v_rcp_f32', 'v_rsq_f32', 'v_sqrt_f32', 'v_sin_f32', 'v_cos_f32')
def split_ops(s):
    out = []; depth = 0; cur = ''
    for ch in s:
        if ch == '[' or ch == '(': depth += 1
        if ch == ']' or ch == ')': depth -= 1
        if ch == ',' and depth == 0: out.append(cur.strip()); cur = ''
        else: cur += ch
    if cur.strip(): out.append(cur.strip())
    return out

class Ins:
    __slots__ = ('text', 'op', 'kind', 'rd', 'wr', 'tag', 'opt', 'passes', 'srcA', 'srcB', 'srcC', 'vm', 'lgkm', 'meta')
    def __init__(self, text, tag=None, opt=False, meta=None):
        self.text = text; self.tag = tag; self.opt = opt; self.meta = meta
        self.passes = 0; self.srcA = self.srcB = self.srcC = (); self.vm = False; self.lgkm = False
        t = text.split(';')[0].strip()
        if t.endswith(':') or t.startswith('.') or t == '':
            self.op = t; self.kind = 'label' if t.endswith(':') else 'dir'; self.rd = set(); self.wr = set(); return
        parts = t.split(None, 1)
        op = parts[0]; self.op = op
        rest = parts[1] if len(parts) > 1 else ''
        ops = split_ops(rest)
        mods = ''
        if ops:
            sp = ops[-1].split(None, 1)
            ops[-1] = sp[0]
            if len(sp) > 1: mods = sp[1]
        regs = [parse_reg(o) or [] for o in ops]
        rd = set(); wr = set()
        def R(lst):
            for l in lst: rd.update(l)
        if op.startswith('v_mfma'):
            self.kind = 'mfma'
            self.passes = 8 if '32x32' in op else 4
            wr.update(regs[0]); self.srcA = tuple(regs[1]); self.srcB = tuple(regs[2]); self.srcC = tuple(regs[3]); R(regs[1:4])
        elif op.startswith('v_'):
            self.kind = 'valu'
            base = op.replace('_e32', '').replace('_e64', '').replace('_dpp', '').replace('_sdwa', '')
            if base in TRANS: self.kind = 'trans'
            if base.startswith('v_permlane') and 'swap' in base:
                wr.update(regs[0]); wr.update(regs[1]); R(regs[:2])
            elif base in ('v_add_co_u32', 'v_sub_co_u32', 'v_addc_co_u32'):
                wr.update(regs[0]); wr.update(regs[1]); R(regs[2:])
            elif base == 'v_nop': pass
            else:
                wr.update(regs[0]); R(regs[1:])
                if base in ('v_fmac_f32', 'v_dot2c_f32_bf16', 'v_writelane_b32') or op.endswith('_dpp'): R(regs[:1])
        elif op.startswith('ds_'):
            self.kind = 'ds'; self.lgkm = True
            if op.startswith('ds_read') or 'permute' in op or 'swizzle' in op: wr.update(regs[0]); R(regs[1:])
            else: R(regs)
        elif op.startswith('buffer_') or op.startswith('global_'):
            self.kind = 'vmem'; self.vm = True
            islds = ' lds' in (' ' + mods) or '_lds_' in op
            if op.startswith('buffer_wbl2') or op.startswith('buffer_inv'): pass
            elif 'load' in op and not islds: wr.update(regs[0]); R(regs[1:])
            else:
                R(regs)
                if islds: rd.add(('s', 'm0'))
        elif op.startswith('s_load') or op.startswith('s_buffer_load') or op.startswith('s_memtime') or op.startswith('s_memrealtime'):
            self.kind = 'smem'; wr.update(regs[0]); R(regs[1:])
        elif op in ('s_waitcnt', 's_nop', 's_barrier', 's_endpgm', 's_sleep', 's_setprio') or op.startswith('s_branch') or op.startswith('s_cbranch'):
            self.kind = 'ctl'
        elif op.startswith('s_cmp') or op.startswith('s_bitcmp'):
            self.kind = 'salu'; R(regs)
        elif op.startswith('s_'):
            self.kind = 'salu'; wr.update(regs[0]); R(regs[1:])
            if 'saveexec' in op: wr.add(('s', 'exec'))
        else:
            raise ValueError('unknown instr: ' + text)
        self.rd = rd; self.wr = wr
    def states(self):
        if self.kind in ('label', 'dir'): return 0
        if self.op == 's_nop': return int(self.text.split()[1], 0) + 1
        return 1
    def cost(self):
        k = self.kind
        if k in ('label', 'dir'): return 0
        if k == 'trans' or 'permlane' in self.op: return 8
        if k == 'vmem': return 14
        if k == 'mfma': return 8
        if k == 'ds': return 5
        if k == 'valu':
            return 4 if self.op.endswith('_e32') else 5
        return 4

class Wait:
    def __init__(self, kind, tags=None, opt=False):
        self.kind = kind; self.tags = None if tags is None else (set([tags]) if isinstance(tags, str) else set(tags)); self.opt = opt
    def cost(self): return 4

class Reset:
    def __init__(self, kind): self.kind = kind; self.opt = False
    def cost(self): return 0

def I(x, **kw):
    return x if not isinstance(x, str) else Ins(x, **kw)

def resolve_waits(items):
    out = []
    vmq = []; lgq = []
    def emit_wait(vm=None, lg=None, opt=False):
        parts = []
        if vm is not None: parts.append(f'vmcnt({vm})')
        if lg is not None: parts.append(f'lgkmcnt({lg})')
        out.append(Ins('s_waitcnt ' + ' '.join(parts), opt=opt))
    def need(q, pred):
        last = -1
        for i, p in enumerate(q):
            if pred(p): last = i
        return last
    for it in items:
        if isinstance(it, Reset):
            if it.kind == 'vm': vmq.clear()
            else: lgq.clear()
            continue
        if isinstance(it, Wait):
            q = vmq if it.kind == 'vm' else lgq
            last = need(q, (lambda p: True) if it.tags is None else (lambda p: p.tag in it.tags))
            if last >= 0:
                n = sum(1 for p in q[last+1:] if not p.opt or it.opt)
                mx = 63 if it.kind == 'vm' else 15
                if it.kind == 'vm': emit_wait(vm=min(n, mx), opt=it.opt)
                else: emit_wait(lg=min(n, mx), opt=it.opt)
                if not it.opt: del q[:last+1]
            continue
        touch = it.rd | it.wr
        vmn = lgn = None
        if touch:
            last = need(vmq, lambda p: p.wr & touch)
            if last >= 0:
                vmn = min(63, sum(1 for p in vmq[last+1:] if not p.opt or it.opt))
                if not it.opt: del vmq[:last+1]
            last = need(lgq, lambda p: p.wr & touch)
            if last >= 0:
                if any(p.kind == 'smem' for p in lgq): lgn = 0; last = len(lgq) - 1
                else: lgn = min(15, sum(1 for p in lgq[last+1:] if not p.opt or it.opt))
                if not it.opt: del lgq[:last+1]
        if vmn is not None or lgn is not None: emit_wait(vmn, lgn, opt=it.opt)
        if it.op == 's_waitcnt' and not it.opt:
            m = re.search(r'vmcnt\((\d+)\)', it.text)
            if m:
                n = int(m.group(1))
                if n == 0: vmq.clear()
                elif len(vmq) > n: del vmq[:len(vmq)-n]
            m = re.search(r'lgkmcnt\((\d+)\)', it.text)
            if m:
                n = int(m.group(1))
                if n == 0: lgq.clear()
                elif len(lgq) > n and not any(p.kind == 'smem' for p in lgq): del lgq[:len(lgq)-n]
        out.append(it)
        if it.vm: vmq.append(it)
        if it.lgkm or it.kind == 'smem': lgq.append(it)
    return out

def isv(r): return r[0] in ('v', 'a')
def hazard_need(p, c):
    n = 0
    pv = p.kind in ('valu', 'trans'); cv = c.kind in ('valu', 'trans')
    if p.kind == 'mfma':
        D = p.wr
        big = {4: 8, 8: 12}[p.passes]
        if c.kind == 'mfma':
            if D & (set(c.srcA) | set(c.srcB)): n = max(n, big)
            if D & set(c.srcC):
                if not (set(c.srcC) == D and c.passes == p.passes): n = max(n, {4: 6, 8: 10}[p.passes])
            elif D & c.wr: n = max(n, {4: 6, 8: 10}[p.passes])
        elif cv or c.kind in ('vmem', 'ds'):
            if D & (c.rd | c.wr): n = max(n, big)
        if cv and set(p.srcC) & c.wr: n = max(n, {4: 3, 8: 7}[p.passes])
    if pv:
        wv = {r for r in p.wr if isv(r)}; ws = {r for r in p.wr if not isv(r)}
        if c.kind == 'mfma' and wv & c.rd: n = max(n, 2)
        if cv and wv & c.rd:
            if c.op.startswith('v_readlane') or c.op.startswith('v_readfirstlane'): n = max(n, 1)
            if 'permlane' in c.op or c.op.endswith('_dpp'): n = max(n, 2)
            if p.kind == 'trans': n = max(n, 1)
            if p.op.startswith('v_dot2'):
                if not (c.op == p.op and c.wr == p.wr): n = max(n, 3)
        if cv and p.op.startswith('v_dot2') and wv & c.wr and c.op != p.op: n = max(n, 3)
        if c.kind in ('vmem', 'ds') and wv & c.rd:
            if p.kind == 'trans': n = max(n, 1)
            if p.op.startswith('v_dot2'): n = max(n, 3)
        if ws:
            if cv and ws & c.rd: n = max(n, 4 if 'lane' in c.op else 2)
            if c.kind == 'vmem' and ws & c.rd: n = max(n, 5)
    if p.kind == 'salu' and ('s', 'm0') in p.wr and c.kind == 'vmem' and ('s', 'm0') in c.rd: n = max(n, 1)
    if p.kind == 'vmem' and 'store' in p.op and ('x3' in p.op or 'x4' in p.op):
        data = {r for r in p.rd if isv(r)}
        if data & c.wr: n = max(n, 2 if cv or c.kind == 'mfma' else 1)
    return n

def insert_nops(items, skip_opt):
    out = []
    for c in items:
        if c.kind in ('label', 'dir') or (skip_opt and c.opt):
            out.append(c); continue
        dist = 0; need = 0
        for p in reversed(out):
            if skip_opt and p.opt: continue
            if dist >= 13: break
            if p.kind not in ('label', 'dir'):
                h = hazard_need(p, c)
                if h - dist > need: need = h - dist
            dist += p.states()
        if need > 0:
            out.append(Ins(f's_nop {need-1}', opt=c.opt))
        out.append(c)
    return out

def finalize(items):
    items = [I(x) for x in items]
    items = resolve_waits(items)
    items = insert_nops(items, True)
    items = insert_nops(items, False)
    return items

def to_text(items):
    return '\n'.join((it.text if it.kind in ('label', 'dir') else '    ' + it.text) for it in items)

def interleave(backbone, streams):
    n = len(backbone)
    st = []
    for items, s, e in streams:
        items = [I(x) if isinstance(x, str) else x for x in items]
        e = min(e, n); assert s < e, (s, e, n)
        def cst(x): return sum(I(y).cost() for y in x) if isinstance(x, list) else x.cost()
        tot = sum(cst(x) for x in items)
        st.append([items, s, e, tot, 0, 0, cst])
    out = []
    for i, grp in enumerate(backbone):
        out += grp
        for S in st:
            items, s, e, tot, pos, done, cst = S
            if i < s or i >= e: continue
            target = tot * (i - s + 1) / (e - s)
            while pos < len(items) and (done + cst(items[pos]) / 2 <= target or i == e - 1):
                x = items[pos]
                if isinstance(x, list): out += x
                else: out.append(x)
                done += cst(x); pos += 1
            S[4] = pos; S[5] = done
    return out
```

```python
import sys, os
sys.path.insert(0, os.path.dirname(os.path.abspath(__file__)))
from asmlib import *

KNAME = "interleave_layers__linear_kernel_hedgehog__glu_gated_glu__prompt_kernel"
WS_EPOCH = 0x0
WS_XID = 0x1000
WS_FR = 0x2000
WS_FX = 0x4000
WS_FO = 0xA000
WS_FH = 0x10000
WS_CSP = 0x20000
WS_ZP = 0x60000
WS_ST = 0x80000
WS_KVP = 0x200000
WS_XF = 0x400000
WS_OF = 0xA00000
WS_WB1P = 0xE00000
WS_HF = 0x1200000
WS_DBG = 0x2200000
WS, SX, SWQKV, SWO, SWD, SWGU, SOUT, SWPHI = [f"s[{i}:{i+3}]" for i in range(4, 36, 4)]
sT, sW, sRB, sN, sC, sTB1, sTB2, sSLOW, sTO = [f"s{i}" for i in range(36, 45)]
sONES, sFT, sHI, sW1K = "s45", "s46", "s47", "s48"
sA, sB, sD, sE = "s50", "s51", "s52", "s53"
sDM = "s54"
sX0, sX1, sX2, sX3 = "s56", "s57", "s58", "s59"
vL, vL16 = "v0", "v1"
vB = ["v1", "v2", "v3"]
vST = "v7"
vR, vS, vA = "v8", "v9", "v10"
vCN = "v11"
vM = 12
vP, vPA = "v14", "v15"
ACC = [16, 32, 48, 64]
AB = 80
TMP = 112
X = 128
aRES = 224; aWP = 240; aCS = 248
def v(i, n=1): return f"v{i}" if n == 1 else f"v[{i}:{i+n-1}]"
def a(i, n=1): return f"a{i}" if n == 1 else f"a[{i}:{i+n-1}]"
L_SM = 155648
L_CSB = L_SM
L_CSA = L_SM + 2048
L_KZ = L_SM + 4096
NSLOT = 152
LOG2E = 1.4426950408889634
import struct
def f2u(x): return struct.unpack('<I', struct.pack('<f', x))[0]
def hx(x): return hex(x & 0xFFFFFFFF)

class K:
    def __init__(self, opts):
        self.o = []; self.tail = []; self.nlab = 0; self.opts = opts; self.nst = 0; self.stnames = []
    def e(self, *xs):
        for x in xs:
            if isinstance(x, (list, tuple)): self.e(*x)
            else: self.o.append(x)
    def lab(self, p="L"):
        self.nlab += 1; return f"{p}_{self.nlab}"
    def stamp(self, name):
        if not self.opts.get('stamps'): return
        self.e("s_memtime s[62:63]", Wait('lgkm'), f"v_writelane_b32 {vST}, s62, {self.nst}")
        self.stnames.append(name); self.nst += 1
    def barrier(self, vm=None, lgkm=True):
        r = []
        if vm: r.append(Wait('vm', vm))
        if lgkm: r.append(Wait('lgkm', 'w'))
        r.append("s_barrier")
        return r
    def rd128(self, dst, addr, bases=vB):
        return f"ds_read_b128 {dst}, {bases[addr >> 16]} offset:{addr & 0xFFFF}"
    def rdtr(self, dreg, cls, addr, second, bases):
        f = v if cls == 'v' else a
        a2 = addr + second
        return [f"ds_read_b64_tr_b16 {f(dreg,2)}, {bases[addr >> 16]} offset:{addr & 0xFFFF}",
                f"ds_read_b64_tr_b16 {f(dreg+2,2)}, {bases[a2 >> 16]} offset:{a2 & 0xFFFF}"]
    def poll(self, soff):
        L = self.lab("L_poll")
        self.e(f"{L}:", f"s_add_u32 {sTO}, {sTO}, 1", "s_cbranch_scc1 L_abort",
               f"buffer_load_dword {vP}, {vPA}, {WS}, {soff} offen sc1", "s_waitcnt vmcnt(0)",
               f"v_cmp_ne_u32_e32 vcc, {sT}, {vP}", f"s_cbranch_vccnz {L}")
    def publish(self, tags, soff):
        Ls = self.lab("L_slow"); Lb = self.lab("L_back")
        self.tail += [f"{Ls}:", "buffer_wbl2 sc1", "s_waitcnt vmcnt(0)", f"buffer_store_dword {vP}, off, {WS}, {soff} sc1", f"s_branch {Lb}"]
        return [f"v_mov_b32_e32 {vP}, {sT}", f"s_cmp_lg_u32 {sSLOW}, 0", "s_mov_b64 exec, 1", Wait('vm', tags), f"s_cbranch_scc1 {Ls}",
                Ins(f"buffer_store_dword {vP}, off, {WS}, {soff}", tag='flag'), f"{Lb}:", "s_mov_b64 exec, -1"]

def hilo_A(k, dst, src, t):
    return [f"v_cvt_pk_bf16_f32 {v(dst)}, {src}, {src}", f"v_and_b32_e32 {t}, 0xffff0000, {v(dst)}",
            f"v_sub_f32_e32 {t}, {src}, {t}", f"v_cvt_pk_bf16_f32 {v(dst+1)}, {t}, 0"]

def ln_finish(k, S, Q, t0, t1, gate):
    r = [f"v_permlane32_swap_b32_e32 {S}, {Q}", f"v_add_f32_e32 {S}, {S}, {Q}", f"v_mov_b32_e32 {Q}, {S}",
         f"v_permlane32_swap_b32_e32 {S}, {Q}",
         f"v_mul_f32_e32 {t0}, {hx(f2u(1/512))}, {S}",
         f"v_mul_f32_e32 {t1}, {t0}, {t0}",
         f"v_mul_f32_e32 {Q}, {hx(f2u(1/512))}, {Q}",
         f"v_sub_f32_e32 {Q}, {Q}, {t1}",
         f"v_max_f32_e32 {Q}, 0, {Q}",
         f"v_add_f32_e32 {Q}, {hx(f2u(1e-5))}, {Q}",
         f"v_rsq_f32_e32 {vR}, {Q}",
         f"v_mul_f32_e32 {t0}, {vCN}, {S}",
         f"v_cvt_pk_bf16_f32 {v(vM+1)}, {t0}, 0",
         f"v_mul_f32_e32 {vA}, {Q}, {vR}",
         f"v_mul_f32_e32 {vS}, {hx(f2u(-LOG2E if gate else LOG2E))}, {vR}",
         f"v_lshlrev_b32_e32 {t1}, 16, {v(vM+1)}",
         f"v_sub_f32_e32 {t1}, {t0}, {t1}",
         f"v_cvt_pk_bf16_f32 {v(vM)}, {t0}, {t1}"]
    return r

def softmax2(k, P, E, out, t):
    r = []
    mx = [t, t+1]; mn = [t+2, t+3]
    for h in range(2):
        p = P + 8*h
        for op, d in (("max", mx[h]), ("min", mn[h])):
            r += [f"v_{op}3_f32 {v(d)}, {v(p)}, {v(p+1)}, {v(p+2)}"]
    for h in range(2):
        p = P + 8*h
        for op, d in (("max", mx[h]), ("min", mn[h])):
            r += [f"v_{op}3_f32 {v(d)}, {v(d)}, {v(p+3)}, {v(p+4)}"]
    for h in range(2):
        p = P + 8*h
        for op, d in (("max", mx[h]), ("min", mn[h])):
            r += [f"v_{op}3_f32 {v(d)}, {v(d)}, {v(p+5)}, {v(p+6)}"]
    for h in range(2):
        p = P + 8*h
        for op, d in (("max", mx[h]), ("min", mn[h])):
            r += [f"v_{op}_f32_e32 {v(d)}, {v(d)}, {v(p+7)}"]
    r += [f"v_permlane32_swap_b32_e32 {v(t)}, {v(t+1)}", f"v_permlane32_swap_b32_e32 {v(t+2)}, {v(t+3)}",
          f"v_max_f32_e32 {v(t)}, {v(t)}, {v(t+1)}", f"v_min_f32_e32 {v(t+2)}, {v(t+2)}, {v(t+3)}",
          f"v_mul_f32_e64 {v(t)}, -{v(t)}, {vS}", f"v_mul_f32_e32 {v(t+2)}, {v(t+2)}, {vS}",
          f"v_mov_b32_e32 {v(t+4)}, {v(t)}", f"v_mov_b32_e32 {v(t+6)}, {v(t+2)}",
          f"v_permlane32_swap_b32_e32 {v(t)}, {v(t+4)}", f"v_permlane32_swap_b32_e32 {v(t+2)}, {v(t+6)}"]
    cM = [t, t+4]; cm = [t+2, t+6]
    sS = f"v[{int(vR[1:])}:{int(vR[1:])+1}]"
    for h in range(2):
        for i in range(0, 8, 2):
            r += [f"v_pk_fma_f32 {v(E+16*h+i,2)}, {v(P+8*h+i,2)}, {sS}, {v(cM[h],2)} op_sel:[0,1,0] op_sel_hi:[1,1,0]"]
        for i in range(0, 8, 2):
            r += [f"v_pk_fma_f32 {v(E+16*h+8+i,2)}, {v(P+8*h+i,2)}, {sS}, {v(cm[h],2)} op_sel:[0,1,0] op_sel_hi:[1,1,0] neg_lo:[1,0,0] neg_hi:[1,0,0]"]
    for i in range(32): r += [f"v_exp_f32_e32 {v(E+i)}, {v(E+i)}"]
    for u in range(4): r += [f"v_pk_add_f32 {v(P+4*u,2)}, {v(E+8*u,2)}, {v(E+8*u+2,2)}", f"v_pk_add_f32 {v(P+4*u+2,2)}, {v(E+8*u+4,2)}, {v(E+8*u+6,2)}"]
    for u in range(4): r += [f"v_pk_add_f32 {v(P+4*u,2)}, {v(P+4*u,2)}, {v(P+4*u+2,2)}"]
    for u in range(4): r += [f"v_add_f32_e32 {v(t+2*u)}, {v(P+4*u)}, {v(P+4*u+1)}"]
    r += [f"v_permlane32_swap_b32_e32 {v(t)}, {v(t+2)}", f"v_permlane32_swap_b32_e32 {v(t+4)}, {v(t+6)}",
          f"v_add_f32_e32 {v(t)}, {v(t)}, {v(t+2)}", f"v_add_f32_e32 {v(t+4)}, {v(t+4)}, {v(t+6)}",
          f"v_rcp_f32_e32 {v(t)}, {v(t)}", f"v_rcp_f32_e32 {v(t+4)}, {v(t+4)}",
          f"v_mov_b32_e32 {v(t+2)}, {v(t)}", f"v_mov_b32_e32 {v(t+6)}, {v(t+4)}",
          f"v_permlane32_swap_b32_e32 {v(t)}, {v(t+2)}", f"v_permlane32_swap_b32_e32 {v(t+4)}, {v(t+6)}"]
    post = []
    for u in range(4):
        blk = []
        for i in range(0, 8, 2): blk += [f"v_pk_mul_f32 {v(E+8*u+i,2)}, {v(E+8*u+i,2)}, {v(t+2*u,2)} op_sel_hi:[1,0]"]
        for i in range(4): blk += [f"v_cvt_pk_bf16_f32 {v(out+4*u+i)}, {v(E+8*u+2*i)}, {v(E+8*u+2*i+1)}"]
        post.append(blk)
    return r, post

def mf(d, A, B, C, shape="32x32x16"):
    n = 16 if shape.startswith("32") else 4
    return f"v_mfma_f32_{shape}_bf16 {v(d,n)}, {A}, {B}, {v(d,n) if C else 0}"

BLK = 16384
R_KV, R_Q, R_XS, R_RP = 0, 65536, 98304, 131072
R_WT = 147456
RP_U = 7296

def prologue(k):
    e = k.e
    e("s_cmp_ge_u32 s2, 0x100", "s_cbranch_scc1 L_end",
      "s_load_dwordx16 s[64:79], s[0:1], 0", "s_load_dwordx2 s[80:81], s[0:1], 64", "s_load_dwordx2 s[84:85], s[0:1], 80",
      "v_lshrrev_b32_e32 v4, 6, v0", "v_and_b32_e32 v0, 63, v0", f"v_readfirstlane_b32 {sW}, v4",
      f"s_and_b32 {sA}, s2, 7", f"s_lshr_b32 {sB}, s2, 3", f"s_and_b32 {sN}, {sB}, 15", f"s_lshr_b32 {sB}, {sB}, 4",
      f"s_lshl_b32 {sA}, {sA}, 1", f"s_add_u32 {sRB}, {sA}, {sB}", f"s_and_b32 {sC}, {sN}, 7",
      f"s_lshl_b32 {sA}, {sRB}, 2", f"s_add_u32 {sTB1}, {sA}, {sW}",
      f"s_and_b32 {sFT}, {sW}, 1", f"s_lshr_b32 {sHI}, {sW}, 1",
      f"s_lshr_b32 {sB}, {sN}, 3", f"s_lshl_b32 {sB}, {sB}, 1", f"s_add_u32 {sA}, {sA}, {sB}", f"s_add_u32 {sTB2}, {sA}, {sHI}",
      f"s_lshl_b32 {sW1K}, {sW}, 10", f"s_mov_b32 {sONES}, 0x3f803f80", f"s_mov_b32 {sTO}, {hx(-(1<<22))}",
      f"v_lshlrev_b32_e32 {vL16}, 4, {vL}", f"v_add_u32_e32 v2, 0x10000, {vL16}", f"v_add_u32_e32 v3, 0x20000, {vL16}",
      f"v_mov_b32_e32 {vST}, 0")
    e("v_lshrrev_b32_e32 v16, 3, v0", "v_and_b32_e32 v17, 7, v0", "v_lshlrev_b32_e32 v4, 10, v16", "v_lshl_add_u32 v4, v17, 4, v4",
      "v_lshrrev_b32_e32 v18, 2, v0", "v_and_b32_e32 v19, 3, v0", "v_mul_u32_u24_e32 v5, 0xc00, v18", "v_lshl_add_u32 v5, v19, 4, v5",
      f"s_lshl_b32 {sX0}, {sTB1}, 15", f"s_add_u32 {sX1}, {sX0}, 0x2000", f"s_add_u32 {sX2}, {sX0}, 0x4000", f"s_add_u32 {sX3}, {sX0}, 0x6000",
      f"s_mul_i32 {sD}, {sW}, 0xc000", f"s_lshl_b32 {sA}, {sN}, 6", f"s_add_u32 {sD}, {sD}, {sA}",
      f"s_lshl_b32 {sE}, {sW}, 11")
    e(Wait('lgkm'))
    def srd(base, p, size): return [f"s_mov_b32 s{base}, s{p}", f"s_mov_b32 s{base+1}, s{p+1}", f"s_mov_b32 s{base+2}, {hx(size)}", f"s_mov_b32 s{base+3}, 0x20000"]
    e(srd(8, 64, 2097152), srd(12, 66, 1572864))
    k.stamp("start")
    e(f"s_load_dword {sT}, s[84:85], 0")
    xs = [sX0, sX1, sX2, sX3]
    for c in range(8):
        for i in range(4):
            e(Ins(f"buffer_load_dwordx4 {v(X+(4*c+i)*4,4)}, v4, {SX}, {xs[i]} offen offset:{c*128}", tag=f"x{c}"))
        e(f"s_add_u32 m0, {sE}, {R_KV + c*8192}", f"s_add_u32 {sDM}, {sD}, {c*4*49152 + 1024}",
          Ins(f"buffer_load_dwordx4 v5, {SWQKV}, {sDM} offen lds", tag=f"wkv{c}"),
          Ins(f"buffer_load_dwordx4 v5, {SWQKV}, {sDM} offen offset:1024 lds", tag=f"wkv{c}"))
        if c == 0:
            e(srd(4, 84, 0x10000000), srd(16, 70, 524288), srd(20, 78, 1835008), srd(28, 80, 2097152), srd(32, 68, 16384))
            e(f"s_cmp_eq_u32 {sFT}, 0", "s_cselect_b32 s24, s74, s76", "s_cselect_b32 s25, s75, s77", f"s_mov_b32 s26, {hx(1835008)}", "s_mov_b32 s27, 0x20000")
        if c == 1 and k.opts.get('warm', True):
            e("s_getpc_b64 s[60:61]", "L_pc:", f"s_lshr_b32 {sA}, s2, 3", f"s_lshl_b32 {sA}, {sA}, 2", f"s_add_u32 {sA}, {sA}, {sW}",
              f"s_mul_i32 {sA}, {sA}, CODE_SLICE", f"v_lshl_add_u32 v20, v0, 7, {sA}",
              "v_cmp_gt_u32_e32 vcc, CODE_LANES, v0", "v_min_u32_e32 v20, CODE_LEN, v20", "s_mov_b64 exec, vcc",
              Ins("global_load_dword v21, v20, s[60:61]", tag='warm'), "s_mov_b64 exec, -1")
    e(f"s_mov_b32 m0, {L_KZ}", f"s_lshl_b32 {sDM}, {sN}, 10", Ins(f"buffer_load_dwordx4 {vL16}, {SWPHI}, {sDM} offen lds", tag='wphi'))
    e("v_cmp_gt_u32_e32 vcc, 32, v0", f"v_mov_b32_e32 v22, {hx(f2u(-1/512))}", f"v_cndmask_b32_e32 {vCN}, 0, v22, vcc")
    e("v_lshrrev_b32_e32 v20, 1, v16", "v_xor_b32_e32 v20, v20, v17", "v_lshlrev_b32_e32 v20, 4, v20", "v_lshl_add_u32 v20, v16, 7, v20",
      f"s_lshl_b32 {sA}, {sW}, 13", f"s_add_u32 {sA}, {sA}, {R_XS}", f"v_add_u32_e32 {v(TMP+8)}, {sA}, v20", f"v_xor_b32_e32 {v(TMP+9)}, 64, {v(TMP+8)}",
      "v_and_b32_e32 v20, 31, v0", "v_lshrrev_b32_e32 v22, 5, v0", "v_bfe_u32 v23, v0, 1, 3", "v_xor_b32_e32 v22, v22, v23",
      "v_lshlrev_b32_e32 v22, 4, v22", "v_lshl_add_u32 v22, v20, 7, v22", f"v_add_u32_e32 {v(TMP+10)}, {sA}, v22",
      f"v_xor_b32_e32 {v(TMP+11)}, 32, {v(TMP+10)}", f"v_xor_b32_e32 {v(TMP+12)}, 64, {v(TMP+10)}", f"v_xor_b32_e32 {v(TMP+13)}, 0x60, {v(TMP+10)}")
    e(f"s_add_u32 {sT}, {sT}, 1", f"s_getreg_b32 {sA}, hwreg(HW_REG_XCC_ID, 0, 4)", f"s_lshl_b32 {sA}, {sA}, 28", f"s_xor_b32 {sSLOW}, {sT}, {sA}",
      f"s_lshl_b32 {sA}, {sRB}, 7", f"s_lshl_b32 {sB}, {sN}, 2", f"s_add_u32 {sA}, {sA}, {sB}", f"s_add_u32 {sA}, {sA}, {WS_XID}",
      f"v_mov_b32_e32 {vP}, {sSLOW}", "s_mov_b64 exec, 1", Ins(f"buffer_store_dword {vP}, off, {WS}, {sA} sc1", tag='xid'), "s_mov_b64 exec, -1")

def tr_base(k, dst, natural, rowb=64, tmp=("v24", "v25")):
    t0, t1 = tmp
    return [f"v_bfe_u32 {t0}, v0, 2, 2", f"v_lshrrev_b32_e32 {t1}, 5, v0", f"v_lshl_add_u32 {t0}, {t1}, {3 if natural else 2}, {t0}",
            f"v_mul_u32_u24_e32 {dst}, {rowb}, {t0}", f"v_bfe_u32 {t0}, v0, 4, 1", f"v_lshl_add_u32 {dst}, {t0}, 5, {dst}",
            f"v_and_b32_e32 {t0}, 3, v0", f"v_lshl_add_u32 {dst}, {t0}, 3, {dst}"]

def wq_dma_l1(k):
    r = []
    for c in range(8):
        r.append([f"s_add_u32 m0, {sW1K}, {R_Q + c*4096}", f"s_add_u32 {sDM}, {sD}, {c*4*49152}",
                  Ins(f"buffer_load_dwordx4 v5, {SWQKV}, {sDM} offen lds", tag="wq")])
    return r

def a1_pass1_l1(k):
    e = k.e
    AK, AV = ACC[0], ACC[1]
    SA = ACC[2]
    e(tr_base(k, "v6", True))
    e(f"v_add_u32_e32 {v(TMP+14)}, {sE}, v6")
    for i in range(10): e(f"v_mov_b32_e32 {v(SA+i)}, 0")
    def stage(c):
        r = []
        buf = (c & 1) * 4096
        for i in range(4): r.append(Ins(f"ds_write_b128 {v(TMP+8+(i&1))}, {v(X+(4*c+i)*4,4)} offset:{buf + i*1024}", tag='xs'))
        for s in range(4): r.append(f"ds_read_b128 {v(X+(4*c+s)*4,4)}, {v(TMP+10+s)} offset:{buf}")
        return r
    e(stage(0))
    wq = wq_dma_l1(k)
    for c in range(8):
        e(k.barrier(vm=f"wkv{c}", lgkm=False))
        for s in range(4):
            for t in range(2):
                e(k.rdtr(AB + (2*s+t)*4, 'v', R_KV + ((4*c+s)*2 + t)*1024, 256, ["v6"]))
        for t in range(2):
            e(k.rdtr(TMP + 4*t, 'v', R_KV + c*8192 + t*1024, 256, [v(TMP+14)]))
        for s in range(4):
            for j in range(4):
                xr = v(X + (4*c+s)*4 + j)
                e(f"v_dot2c_f32_bf16_e32 {v(SA+j)}, {sONES}, {xr}", f"v_dot2c_f32_bf16_e32 {v(SA+4+j)}, {xr}, {xr}")
        for j in range(4):
            for t in range(2): e(f"v_dot2c_f32_bf16_e32 {v(SA+8+t)}, {sONES}, {v(TMP+4*t+j)}")
        bb = []
        for s in range(4):
            for t in range(2):
                bb.append([mf([AK, AV][t], v(AB+(2*s+t)*4, 4), v(X+(4*c+s)*4, 4), not (c == 0 and s == 0))])
        st = []
        if c < 7: st.append((stage(c+1), 4, 8))
        st.append(([wq[c]], 6, 8))
        e(interleave(bb, st))
    k.stamp("p1_end")
    e("v_and_b32_e32 v24, 31, v0" .replace("v24", v(TMP)), f"v_lshrrev_b32_e32 {v(TMP+1)}, 5, v0", f"v_lshlrev_b32_e32 {v(TMP)}, 5, {v(TMP)}",
      f"v_add_u32_e32 {v(TMP)}, {L_CSA}, {v(TMP)}",
      f"v_lshl_add_u32 {v(TMP+1)}, {v(TMP+1)}, 2, {v(TMP)}", f"s_lshl_b32 {sA}, {sW}, 3", f"v_add_u32_e32 {v(TMP+1)}, {sA}, {v(TMP+1)}",
      Ins(f"ds_write_b32 {v(TMP+1)}, {v(SA+8)}", tag='w'), Ins(f"ds_write_b32 {v(TMP+1)}, {v(SA+9)} offset:1024", tag='w'))
    e(f"v_add_f32_e32 {v(SA)}, {v(SA)}, {v(SA+1)}", f"v_add_f32_e32 {v(SA+2)}, {v(SA+2)}, {v(SA+3)}",
      f"v_add_f32_e32 {v(SA+4)}, {v(SA+4)}, {v(SA+5)}", f"v_add_f32_e32 {v(SA+6)}, {v(SA+6)}, {v(SA+7)}",
      f"v_add_f32_e32 {v(SA)}, {v(SA)}, {v(SA+2)}", f"v_add_f32_e32 {v(SA+4)}, {v(SA+4)}, {v(SA+6)}")
    e(k.barrier())
    for t in range(2):
        e(f"ds_read_b128 {v(AB+8*t,4)}, {v(TMP)} offset:{t*1024}", f"ds_read_b128 {v(AB+8*t+4,4)}, {v(TMP)} offset:{t*1024+16}")
    e(f"v_bfe_u32 {v(TMP+2)}, v0, 2, 2", f"v_lshrrev_b32_e32 {v(TMP+3)}, 5, v0", f"v_lshl_add_u32 {v(TMP+2)}, {v(TMP+3)}, 2, {v(TMP+2)}",
      f"v_lshlrev_b32_e32 {v(TMP+2)}, 5, {v(TMP+2)}", f"v_bfe_u32 {v(TMP+3)}, v0, 4, 1", f"v_lshl_add_u32 {v(TMP+2)}, {v(TMP+3)}, 9, {v(TMP+2)}",
      f"v_cmp_eq_u32_e32 vcc, 0, {v(TMP+3)}",
      f"v_and_b32_e32 {v(TMP+3)}, 3, v0", f"v_lshl_add_u32 {v(TMP+2)}, {v(TMP+3)}, 3, {v(TMP+2)}", f"v_add_u32_e32 {v(TMP+2)}, {L_KZ}, {v(TMP+2)}",
      Wait('vm', 'wphi'),
      f"ds_read_b64_tr_b16 {v(TMP+4,2)}, {v(TMP+2)}", f"ds_read_b64_tr_b16 {v(TMP+6,2)}, {v(TMP+2)} offset:256")
    e(ln_finish(k, v(SA), v(SA+4), v(SA+1), v(SA+2), False))
    for t in range(2):
        b = AB + 8*t
        e(f"v_pk_add_f32 {v(b,2)}, {v(b,2)}, {v(b+2,2)}", f"v_pk_add_f32 {v(b+4,2)}, {v(b+4,2)}, {v(b+6,2)}",
          f"v_pk_add_f32 {v(b,2)}, {v(b,2)}, {v(b+4,2)}", f"v_add_f32_e32 {v(b)}, {v(b)}, {v(b+1)}")
        e(hilo_A(k, b+2, v(b), v(b+1)))
        e(f"v_accvgpr_write_b32 {a(aCS+2*t)}, {v(b+2)}", f"v_accvgpr_write_b32 {a(aCS+2*t+1)}, {v(b+3)}")
    for j in range(4):
        e(f"v_cndmask_b32_e32 {v(TMP+8)}, 0, {v(TMP+4+j)}, vcc", f"v_sub_u32_e32 {v(TMP+9)}, {v(TMP+4+j)}, {v(TMP+8)}",
          f"v_accvgpr_write_b32 {a(aWP+j)}, {v(TMP+8)}", f"v_accvgpr_write_b32 {a(aWP+4+j)}, {v(TMP+9)}")

def kv_epilogue(k, L, R_PHI, early, mid):
    e = k.e
    AK, AV, PK = ACC[0], ACC[1], ACC[2]
    KBf = ACC[3]
    e(mf(AK, a(aCS, 2), v(vM, 2), True, "32x32x8"), mf(AV, a(aCS+2, 2), v(vM, 2), True, "32x32x8"))
    e(f"v_and_b32_e32 {v(TMP+8)}, 31, v0", f"v_lshrrev_b32_e32 {v(TMP+9)}, 5, v0", f"v_lshlrev_b32_e32 {v(TMP+8)}, 5, {v(TMP+8)}",
      f"v_lshl_add_u32 {v(TMP+8)}, {v(TMP+9)}, 4, {v(TMP+8)}", f"s_add_u32 {sA}, {sW1K}, {R_PHI}", f"v_add_u32_e32 {v(TMP+8)}, {sA}, {v(TMP+8)}")
    e(early)
    for i in range(8): e(f"v_cvt_pk_bf16_f32 {v(KBf+i)}, {v(AK+2*i)}, {v(AK+2*i+1)}")
    e(mf(PK, a(aWP, 4), v(KBf, 4), False), mf(PK, a(aWP+4, 4), v(KBf+4, 4), True))
    for i in range(16): e(f"v_mul_f32_e32 {v(AV+i)}, {vR}, {v(AV+i)}")
    for i in range(8): e(f"v_cvt_pk_bf16_f32 {v(KBf+8+i)}, {v(AV+2*i)}, {v(AV+2*i+1)}")
    for h in range(2): e(Ins(f"ds_write_b128 {v(TMP+8)}, {v(KBf+8+4*h,4)} offset:{16384 + h*4096}", tag='w'))
    pre, post = softmax2(k, PK, AB, AK, TMP)
    e(pre)
    for u in range(4):
        e(post[u], Ins(f"ds_write_b128 {v(TMP+8)}, {v(AK+4*u,4)} offset:{u*4096}", tag='w'))
    e(f"s_lshl_b32 {sA}, {sW}, 12", f"s_add_u32 {sA}, {sA}, {R_PHI}", f"v_lshl_add_u32 {v(TMP+9)}, v0, 3, {sA}",
      f"s_lshl_b32 {sA}, {sHI}, 12", f"s_add_u32 {sA}, {sA}, {R_PHI + 16384}", f"v_lshl_add_u32 {v(TMP+10)}, v0, 3, {sA}")
    for j in range(4): e(f"v_mov_b32_e32 {v(TMP+12+j)}, {sONES}")
    e(k.barrier())
    k.stamp("phi_bar")
    for s in range(4):
        e(f"ds_read_b64_tr_b16 {v(AB+8*s,2)}, {v(TMP+9)} offset:{s*1024}", f"ds_read_b64_tr_b16 {v(AB+8*s+2,2)}, {v(TMP+9)} offset:{s*1024+512}",
          f"ds_read_b64_tr_b16 {v(AB+8*s+4,2)}, {v(TMP+10)} offset:{s*1024}", f"ds_read_b64_tr_b16 {v(AB+8*s+6,2)}, {v(TMP+10)} offset:{s*1024+512}")
    e(f"s_lshl_b32 {sA}, {sN}, 2", f"s_add_u32 {sA}, {sA}, {sW}", f"s_lshl_b32 {sA}, {sA}, 4", f"s_add_u32 {sB}, {sA}, {sRB}",
      f"s_lshl_b32 {sX0}, {sA}, 10", f"s_add_u32 {sX0}, {sX0}, {WS_KVP + L*0x100000}",
      f"s_lshl_b32 {sX1}, {sA}, 6", f"s_add_u32 {sX1}, {sX1}, {WS_ZP + L*0x10000}",
      f"s_lshl_b32 {sX2}, {sB}, 10", f"s_add_u32 {sX2}, {sX2}, {WS_KVP + L*0x100000}",
      f"s_lshl_b32 {sX3}, {sB}, 6", f"s_add_u32 {sX3}, {sX3}, {WS_ZP + L*0x10000}",
      f"v_mov_b32_e32 {v(TMP+11)}, 0xfff")
    KV, Z = TMP, TMP + 4
    for s in range(4):
        e(mf(KV, v(AB+8*s, 4), v(AB+8*s+4, 4), s > 0, "16x16x32"), mf(Z, v(AB+8*s, 4), v(TMP+12, 4), s > 0, "16x16x32"))
    e(f"v_bfi_b32 {v(KV)}, {v(TMP+11)}, {sT}, {v(KV)}", Ins(f"buffer_store_dwordx4 {v(KV,4)}, {vL16}, {WS}, {sX2} offen sc1", tag='kvp'),
      f"v_bfi_b32 {v(Z)}, {v(TMP+11)}, {sT}, {v(Z)}", "s_mov_b32 exec_lo, 0x10001", "s_mov_b32 exec_hi, 0x10001",
      Ins(f"buffer_store_dwordx4 {v(Z,4)}, v0, {WS}, {sX3} offen sc1", tag='kvp'), "s_mov_b64 exec, -1")
    k.stamp("kv_pub")
    e(mid)

def repack_dma(k):
    r = [f"s_mul_i32 {sA}, {sRB}, {32*3584}", f"s_mul_i32 {sB}, {sN}, 224", f"s_add_u32 {sDM}, {sA}, {sB}",
         f"s_mul_i32 {sA}, {sHI}, 192", f"s_mul_i32 {sB}, {sFT}, {RP_U}", f"s_lshl_b32 {sX0}, {sA}, 4", f"s_add_u32 {sB}, {sB}, {sX0}"]
    t0, t1, t2 = v(TMP+10), v(TMP+11), v(TMP+12)
    r += [f"v_add_u32_e32 {t0}, {sA}, v0"]
    for jj in range(4):
        r += [f"v_mul_u32_u24_e32 {t1}, 0x124a, {t0}", f"v_lshrrev_b32_e32 {t1}, 16, {t1}",
              f"v_mul_u32_u24_e32 {t2}, {3584 - 14*16}, {t1}", f"v_lshl_add_u32 v4, {t0}, 4, {t2}",
              f"s_add_u32 m0, {sB}, {R_RP + jj*1024}", f"v_add_u32_e32 {t0}, 64, {t0}",
              Ins(f"buffer_load_dwordx4 v4, {SWGU}, {sDM} offen lds", tag='rp')]
    return r

def res_dma(k):
    t0, t1 = v(TMP+10), v(TMP+11)
    return [f"v_lshrrev_b32_e32 {t0}, 2, v0", f"v_and_b32_e32 {t1}, 3, v0", f"v_lshlrev_b32_e32 {t0}, 10, {t0}", f"v_lshl_add_u32 v4, {t1}, 4, {t0}",
            f"s_lshl_b32 {sA}, {sTB2}, 15", f"s_lshl_b32 {sB}, {sC}, 7", f"s_add_u32 {sA}, {sA}, {sB}", f"s_lshl_b32 {sB}, {sFT}, 6", f"s_add_u32 {sDM}, {sA}, {sB}",
            f"s_add_u32 m0, {sE}, {R_WT}", "s_nop 0", Ins(f"buffer_load_dwordx4 v4, {SX}, {sDM} offen lds", tag='res'),
            f"s_add_u32 {sDM}, {sDM}, {16384 - 1024}", Ins(f"buffer_load_dwordx4 v4, {SX}, {sDM} offen offset:1024 lds", tag='res')]

def res_finish(k, T):
    r = [f"v_and_b32_e32 {v(T+8)}, 31, v0", f"v_lshrrev_b32_e32 {v(T)}, 5, v0", f"v_lshlrev_b32_e32 {v(T+8)}, 6, {v(T+8)}", f"v_lshl_add_u32 {v(T+8)}, {v(T)}, 3, {v(T+8)}",
         f"s_add_u32 {sA}, {sE}, {R_WT}", f"v_add_u32_e32 {v(T+8)}, {sA}, {v(T+8)}", Wait('vm', 'res')]
    for i in range(4): r += [f"ds_read_b64 {v(T+2*i,2)}, {v(T+8)} offset:{16*i}"]
    for i in range(8):
        r += [f"v_lshlrev_b32_e32 {v(T+8)}, 16, {v(T+i)}", f"v_and_b32_e32 {v(T+i)}, 0xffff0000, {v(T+i)}",
              f"v_accvgpr_write_b32 {a(aRES+2*i)}, {v(T+8)}", f"v_accvgpr_write_b32 {a(aRES+2*i+1)}, {v(T+i)}"]
    return r

def wo_dma(k, R_WO):
    r = []
    for j in range(16):
        r.append([f"s_add_u32 m0, {sW1K}, {R_WO + j*4096}", f"s_add_u32 {sDM}, {sD}, {j*32768}",
                  Ins(f"buffer_load_dwordx4 v5, {SWO}, {sDM} offen lds", tag='wo')])
    return r
def wo_addr(k, t0):
    return [f"v_bfe_u32 {t0}, v0, 2, 3", f"v_lshlrev_b32_e32 v5, 10, {t0}", f"v_lshrrev_b32_e32 {t0}, 5, v0", f"v_lshl_add_u32 v5, {t0}, 6, v5",
            f"v_and_b32_e32 {t0}, 3, v0", f"v_lshl_add_u32 v5, {t0}, 4, v5",
            f"s_lshl_b32 {sD}, {sW}, 13", f"s_lshl_b32 {sA}, {sC}, 7", f"s_add_u32 {sD}, {sD}, {sA}"]

def repack_csq(k):
    e = k.e
    e(k.barrier(vm=['rp', 'wq'], lgkm=False))
    F = ACC[2]
    T = ACC[3]
    e(tr_base(k, v(T), False, rowb=224, tmp=(v(T+1), v(T+2))))
    e(f"v_bfe_u32 {v(T+1)}, v0, 4, 1", f"v_mul_u32_u24_e32 {v(T+1)}, {RP_U - 32}, {v(T+1)}", f"s_lshl_b32 {sA}, {sW}, 6", f"s_add_u32 {sA}, {sA}, {R_RP}",
      f"v_add3_u32 {v(T)}, {v(T)}, {v(T+1)}, {sA}")
    for tt in range(2):
        for k2 in range(2):
            e(k.rdtr(F + (tt*2+k2)*4, 'v', k2*3584 + tt*32, 1792, [v(T)]))
    e(f"s_add_u32 {sA}, {sW1K}, {R_Q}", f"v_add_u32_e32 {v(T+1)}, {sA}, v6")
    for c in range(8): e(k.rdtr(AB + 4*c, 'v', c*4096, 256, [v(T+1)]))
    for j in range(4): e(f"v_mov_b32_e32 {v(T+4+j)}, 0")
    e(f"s_mul_i32 {sX2}, {sN}, 229376", f"s_add_u32 {sX2}, {sX2}, {WS_WB1P}")
    for tt in range(2):
        e(f"s_lshl_b32 {sA}, {sW}, 1", f"s_add_u32 {sA}, {sA}, {tt}",
          f"s_mul_i32 {sB}, {sRB}, 6", f"s_add_u32 {sB}, {sB}, {sA}",
          f"s_lshl_b32 {sDM}, {sA}, 4", f"s_add_u32 {sDM}, {sDM}, {sRB}", f"s_lshl_b32 {sDM}, {sDM}, 1",
          f"s_cmp_lt_u32 {sA}, 3", f"s_cselect_b32 {sB}, {sB}, {sDM}", f"s_cselect_b32 {sX3}, 3, 1", f"s_lshl_b32 {sX3}, {sX3}, 10",
          f"s_lshl_b32 {sB}, {sB}, 10", f"s_add_u32 {sB}, {sB}, {sX2}",
          f"s_cmp_eq_u32 {sA}, 7", f"s_cselect_b32 {sB}, {hx(WS_DBG + 0x100000)}, {sB}",
          Ins(f"buffer_store_dwordx4 {v(F+tt*8,4)}, {vL16}, {WS}, {sB} offen sc1", tag='rps'),
          f"s_add_u32 {sB}, {sB}, {sX3}",
          Ins(f"buffer_store_dwordx4 {v(F+tt*8+4,4)}, {vL16}, {WS}, {sB} offen sc1", tag='rps'))
    for j in range(8):
        for tt in range(2): e(f"v_dot2c_f32_bf16_e32 {v(T+4+tt)}, {sONES}, {v(F+tt*8+j)}")
    e(f"v_permlane32_swap_b32_e32 {v(T+4)}, {v(T+5)}", f"v_add_f32_e32 {v(T+4)}, {v(T+4)}, {v(T+5)}",
      f"s_lshl_b32 {sA}, {sN}, 14", f"s_lshr_b32 {sB}, {sRB}, 2", f"s_lshl_b32 {sB}, {sB}, 12", f"s_add_u32 {sA}, {sA}, {sB}",
      f"s_and_b32 {sB}, {sRB}, 3", f"s_lshl_b32 {sB}, {sB}, 2", f"s_add_u32 {sA}, {sA}, {sB}", f"s_add_u32 {sA}, {sA}, {sW1K}", f"s_add_u32 {sA}, {sA}, {WS_CSP}",
      Ins(f"buffer_store_dword {v(T+4)}, {vL16}, {WS}, {sA} offen sc1", tag='rps'))
    for j in range(16):
        for u in range(2): e(f"v_dot2c_f32_bf16_e32 {v(T+6+u)}, {sONES}, {v(AB+2*j+u)}")
    e(f"v_and_b32_e32 {v(T+8)}, 31, v0", f"v_lshrrev_b32_e32 {v(T+9)}, 5, v0", f"v_lshlrev_b32_e32 {v(T+8)}, 5, {v(T+8)}",
      f"v_add_u32_e32 {v(T+8)}, {L_CSA}, {v(T+8)}", f"v_lshl_add_u32 {v(T+9)}, {v(T+9)}, 2, {v(T+8)}", f"s_lshl_b32 {sA}, {sW}, 3", f"v_add_u32_e32 {v(T+9)}, {sA}, {v(T+9)}",
      f"v_add_f32_e32 {v(T+6)}, {v(T+6)}, {v(T+7)}", Ins(f"ds_write_b32 {v(T+9)}, {v(T+6)}", tag='w'))
    e(k.barrier())
    b = TMP
    e(f"ds_read_b128 {v(b,4)}, {v(T+8)}", f"ds_read_b128 {v(b+4,4)}, {v(T+8)} offset:16",
      f"v_pk_add_f32 {v(b,2)}, {v(b,2)}, {v(b+2,2)}", f"v_pk_add_f32 {v(b+4,2)}, {v(b+4,2)}, {v(b+6,2)}",
      f"v_pk_add_f32 {v(b,2)}, {v(b,2)}, {v(b+4,2)}", f"v_add_f32_e32 {v(b)}, {v(b)}, {v(b+1)}")
    e(hilo_A(k, b+2, v(b), v(b+1)))
    e(f"v_accvgpr_write_b32 {a(aCS+4)}, {v(b+2)}", f"v_accvgpr_write_b32 {a(aCS+5)}, {v(b+3)}")

def fr_flag(k):
    return [f"s_lshl_b32 {sA}, {sN}, 8", f"s_lshl_b32 {sB}, {sTB1}, 2", f"s_add_u32 {sA}, {sA}, {sB}", f"s_add_u32 {sA}, {sA}, {WS_FR}",
            f"v_mov_b32_e32 {vP}, {sT}", Wait('vm', 'rps'), "s_mov_b64 exec, 1", Ins(f"buffer_store_dword {vP}, off, {WS}, {sA} sc1", tag='flag'), "s_mov_b64 exec, -1"]

def q_phase(k, L, qaddr, trbases, second, fill, post_fill):
    e = k.e
    AQ, PK, PQ, KBf = ACC[1], ACC[2], ACC[0], ACC[3]
    LA = 4
    for s in range(LA): e(k.rdtr(AB + 4*s, 'v', qaddr(s), second, trbases))
    bb = []
    for s in range(32):
        g = [mf(AQ, v(AB + 4*(s % 8), 4), v(X + 4*s, 4), s > 0)]
        if s + LA < 32: g += k.rdtr(AB + 4*((s+LA) % 8), 'v', qaddr(s+LA), second, trbases)
        bb.append(g)
    e(interleave(bb, fill))
    e(mf(AQ, a(aCS+4, 2), v(vM, 2), True, "32x32x8"))
    def kvloads(tag):
        r = []
        for j in range(4):
            r.append(f"s_add_u32 {sA}, {sX0}, {j*4096}")
            for i in range(4): r.append(Ins(f"buffer_load_dwordx4 {v(X+(4*j+i)*4,4)}, {vL16}, {WS}, {sA} offen offset:{i*1024} sc1", tag=tag))
        r.append(Ins(f"buffer_load_dwordx4 {v(X+64,4)}, {vL16}, {WS}, {sX1} offen sc1", tag=tag))
        return r
    k.stamp("q_end")
    e(kvloads('kvl'))
    if L == 0:
        e(f"v_and_b32_e32 {v(X+68)}, 15, v0", f"v_lshlrev_b32_e32 {v(X+68)}, 2, {v(X+68)}", f"s_lshl_b32 {sA}, {sRB}, 7", f"s_add_u32 {sA}, {sA}, {WS_XID}",
          f"buffer_load_dword {v(X+69)}, {v(X+68)}, {WS}, {sA} offen sc1")
    e(post_fill)
    for i in range(8): e(f"v_cvt_pk_bf16_f32 {v(KBf+i)}, {v(AQ+2*i)}, {v(AQ+2*i+1)}")
    e(mf(PK, a(aWP, 4), v(KBf, 4), False), mf(PK, a(aWP+4, 4), v(KBf+4, 4), True))
    e(f"v_and_b32_e32 {v(TMP+8)}, 15, v0", f"v_lshrrev_b32_e32 {v(TMP+9)}, 4, v0", f"v_lshlrev_b32_e32 {v(TMP+8)}, 5, {v(TMP+8)}",
      f"v_lshl_add_u32 {v(TMP+8)}, {v(TMP+9)}, 3, {v(TMP+8)}", f"s_add_u32 {sA}, {sW1K}, {L_KZ}", f"v_add_u32_e32 {v(TMP+8)}, {sA}, {v(TMP+8)}",
      f"v_and_b32_e32 {v(TMP+10)}, 3, v0", f"v_lshlrev_b32_e32 {v(TMP+9)}, 5, {v(TMP+9)}", f"v_lshl_add_u32 {v(TMP+9)}, {v(TMP+10)}, 3, {v(TMP+9)}",
      f"v_add_u32_e32 {v(TMP+9)}, {sA}, {v(TMP+9)}",
      f"v_and_b32_e32 {v(TMP+11)}, 31, v0", f"v_and_b32_e32 {v(TMP+10)}, 19, v0", f"v_cmp_gt_u32_e32 vcc, 16, {v(TMP+11)}",
      f"v_lshrrev_b32_e32 {v(TMP+12)}, 5, v0", f"v_cndmask_b32_e32 {v(TMP+10)}, {v(TMP+10)}, {v(TMP+11)}, vcc",
      f"v_lshlrev_b32_e32 {v(TMP+10)}, 5, {v(TMP+10)}", f"v_lshl_add_u32 {v(TMP+10)}, {v(TMP+12)}, 4, {v(TMP+10)}", f"v_add_u32_e32 {v(TMP+10)}, {L_KZ}, {v(TMP+10)}")
    pre, post = softmax2(k, PK, AB, PQ, TMP)
    e(pre)
    for u in range(4): e(post[u])
    k.stamp("phiq_end")
    Lc = k.lab("L_chk"); Lr = k.lab("L_retry")
    k.tail += [f"{Lr}:", f"s_add_u32 {sTO}, {sTO}, 1", "s_cbranch_scc1 L_abort"] + kvloads(None) + ["s_waitcnt vmcnt(0)", f"s_branch {Lc}"]
    SM, CK = TMP, v(TMP+4)
    e(f"{Lc}:")
    e(f"v_xor_b32_e32 {CK}, {sT}, {v(X)}")
    for j in range(1, 16):
        e(f"v_bitop3_b32 {CK}, {CK}, {sT}, {v(X+4*j)} bitop3:0xf6")
        src = X if j == 1 else SM
        e(f"v_pk_add_f32 {v(SM,2)}, {v(src,2)}, {v(X+4*j,2)}", f"v_pk_add_f32 {v(SM+2,2)}, {v(src+2,2)}, {v(X+4*j+2,2)}")
    e(f"v_bitop3_b32 {CK}, {CK}, {sT}, {v(X+64)} bitop3:0xf6", f"v_and_b32_e32 {CK}, 0xfff, {CK}", f"v_cmp_ne_u32_e32 vcc, 0, {CK}")
    e(f"v_cvt_pk_bf16_f32 {v(SM)}, {v(SM)}, {v(SM+1)}", f"v_cvt_pk_bf16_f32 {v(SM+1)}, {v(SM+2)}, {v(SM+3)}", f"s_cbranch_vccnz {Lr}")
    e(Ins(f"ds_write_b64 {v(TMP+8)}, {v(SM,2)}", tag='w'))
    for sh in (4, 8):
        for j in range(4): e(f"v_add_f32_dpp {v(X+64+j)}, {v(X+64+j)}, {v(X+64+j)} row_ror:{sh} row_mask:0xf bank_mask:0xf")
    e(f"v_cvt_pk_bf16_f32 {v(SM+2)}, {v(X+64)}, {v(X+65)}", f"v_cvt_pk_bf16_f32 {v(SM+3)}, {v(X+66)}, {v(X+67)}",
      Ins(f"ds_write_b64 {v(TMP+9)}, {v(SM+2,2)} offset:512", tag='w'))
    if L == 0:
        e(f"v_cmp_ne_u32_e32 vcc, {sSLOW}, {v(X+69)}", "s_cmp_lg_u64 vcc, 0", f"s_cselect_b32 {sSLOW}, 1, 0")
        if k.opts.get('force_slow'): e(f"s_mov_b32 {sSLOW}, 1")
    e(k.barrier(vm=['wo']))
    k.stamp("kz_bar")
    for u in range(4): e(f"ds_read_b128 {v(AB+4*u,4)}, {v(TMP+10)} offset:{u*1024}")
    O = [ACC[1], ACC[2]]
    e(f"s_lshl_b32 {sA}, {sTB1}, 15", f"s_lshl_b32 {sB}, {sN}, 11", f"s_add_u32 {sA}, {sA}, {sB}", f"s_add_u32 {sX2}, {sA}, {WS_OF + L*0x200000}",
      f"s_lshl_b32 {sA}, {sTB1}, 7", f"s_lshl_b32 {sB}, {sN}, 2", f"s_add_u32 {sA}, {sA}, {sB}", f"s_add_u32 {sX3}, {sA}, {WS_FO + L*0x2000}")
    for h in range(2):
        e(mf(O[h], v(AB+8*h, 4), v(PQ+8*h, 4), False), mf(O[h], v(AB+8*h+4, 4), v(PQ+8*h+4, 4), True))
    for h in range(2):
        o = O[h]
        e(f"v_add_f32_e32 {v(o+8)}, {v(o+8)}, {v(o+9)}", f"v_add_f32_e32 {v(o+10)}, {v(o+10)}, {v(o+11)}", f"v_add_f32_e32 {v(o+8)}, {hx(f2u(1e-6))}, {v(o+8)}",
          f"v_add_f32_e32 {v(o+8)}, {v(o+8)}, {v(o+10)}", f"v_rcp_f32_e32 {v(o+8)}, {v(o+8)}")
        if h == 0:
            for i in range(8): e(f"v_mul_f32_e32 {v(o+i)}, {v(o+8)}, {v(o+i)}")
        else:
            for i in range(0, 8, 2): e(f"v_pk_mul_f32 {v(o+i,2)}, {v(o+i,2)}, {v(o+8,2)} op_sel_hi:[1,0]")
        for i in range(4): e(f"v_cvt_pk_bf16_f32 {v(o+12+i)}, {v(o+2*i)}, {v(o+2*i+1)}")
        e(Ins(f"buffer_store_dwordx4 {v(o+12,4)}, {vL16}, {WS}, {sX2} offen offset:{h*1024}", tag='ost'))
    e(k.publish('ost', sX3))
    k.stamp("o_pub")

sGB = {'g': "s60", 'h': "s61"}
sW4K = "s49"
def grp_dma(kind, gi, blk):
    tag = f"{kind}{gi}"
    r = [[f"s_add_u32 m0, {sW4K}, {blk*BLK}", f"s_add_u32 {sDM}, {sGB[kind]}, {gi*BLK}",
          Ins(f"buffer_load_dwordx4 {vL16}, {WS}, {sDM} offen lds", tag=tag)]]
    for i in range(1, 4): r.append(Ins(f"buffer_load_dwordx4 {vL16}, {WS}, {sDM} offen offset:{i*1024} lds", tag=tag))
    return r

def wd_addr(k, t0):
    return [f"v_lshrrev_b32_e32 {t0}, 2, v0", f"v_lshlrev_b32_e32 v6, 10, {t0}", f"v_and_b32_e32 {t0}, 3, v0", f"v_lshl_add_u32 v6, {t0}, 4, v6",
            f"s_mul_i32 s55, {sHI}, {896*1024}", f"s_lshl_b32 {sA}, {sC}, 7", f"s_add_u32 s55, s55, {sA}", f"s_lshl_b32 {sA}, {sFT}, 6", f"s_add_u32 s55, s55, {sA}"]
def wd_load(i, vo="v6"):
    t, i2 = i // 8, i % 8
    return [f"s_add_u32 s89, s55, {(i2*112 + t*16)*1024}", Ins(f"buffer_load_dwordx4 {a(4*i,4)}, {vo}, {SWD}, s89 offen", tag=f"wd{i}")]
def wd_tr_addr(k, d0, d1, tmp):
    return tr_base(k, d1, False, tmp=tmp) + [f"s_add_u32 {sA}, {sE}, {R_WT}", f"v_add_u32_e32 {d0}, {sA}, {vL16}", f"v_add_u32_e32 {d1}, {sA}, {d1}"]
def wd_tr(i, d0, d1):
    o = (i & 1) * 1024
    return [Ins(f"ds_write_b128 {d0}, {a(4*i,4)} offset:{o}", tag='wt'),
            f"ds_read_b64_tr_b16 {a(4*i,2)}, {d1} offset:{o}", f"ds_read_b64_tr_b16 {a(4*i+2,2)}, {d1} offset:{o+512}"]

def xchg_epilogue(k, R_EX, pxor, stage, vis, after_bar, final):
    e = k.e
    A0, A1, T = ACC[0], ACC[1], ACC[2]
    for i in range(4): e(Ins(f"ds_write_b128 {v(TMP)}, {v(A1+4*i,4)} offset:{i*1024}", tag='w'))
    e(k.barrier(vm=vis))
    for i in range(4): e(f"ds_read_b128 {v(T+4*i,4)}, {v(TMP+1)} offset:{i*1024}")
    for i in range(0, 16, 2): e(f"v_pk_add_f32 {v(A0+i,2)}, {v(A0+i,2)}, {v(T+i,2)}")
    for i in range(8): e(f"v_cvt_pk_bf16_f32 {v(A1+i)}, {v(A0+2*i)}, {v(A0+2*i+1)}")
    if final:
        e(f"v_permlane32_swap_b32_e32 {v(A1)}, {v(A1+2)}", f"v_permlane32_swap_b32_e32 {v(A1+1)}, {v(A1+3)}",
          f"v_permlane32_swap_b32_e32 {v(A1+4)}, {v(A1+6)}", f"v_permlane32_swap_b32_e32 {v(A1+5)}, {v(A1+7)}",
          f"buffer_store_dwordx4 {v(A1,4)}, {v(TMP+2)}, {SOUT}, {sX0} offen", f"buffer_store_dwordx4 {v(A1+4,4)}, {v(TMP+2)}, {SOUT}, {sX0} offen offset:32")
        return
    e(Ins(f"buffer_store_dwordx4 {v(A1,4)}, {vL16}, {WS}, {sX0} offen", tag='xst'), Ins(f"buffer_store_dwordx4 {v(A1+4,4)}, {vL16}, {WS}, {sX0} offen offset:1024", tag='xst'))
    e(f"v_pk_add_f32 {v(T,2)}, {v(A0,2)}, {v(A0+2,2)}", f"v_pk_mul_f32 {v(T+2,2)}, {v(A0,2)}, {v(A0,2)}", f"v_pk_fma_f32 {v(T+2,2)}, {v(A0+2,2)}, {v(A0+2,2)}, {v(T+2,2)}")
    for i in range(4, 16, 2):
        e(f"v_pk_add_f32 {v(T,2)}, {v(T,2)}, {v(A0+i,2)}", f"v_pk_fma_f32 {v(T+2,2)}, {v(A0+i,2)}, {v(A0+i,2)}, {v(T+2,2)}")
    e(f"v_add_f32_e32 {v(T)}, {v(T)}, {v(T+1)}", f"v_add_f32_e32 {v(T+2)}, {v(T+2)}, {v(T+3)}",
      f"v_permlane32_swap_b32_e32 {v(T)}, {v(T+2)}", f"v_add_f32_e32 {v(T)}, {v(T)}, {v(T+2)}",
      Ins(f"buffer_store_dword {v(T)}, {v(TMP+2)}, {WS}, {sX1} offen", tag='xst'))
    for i in range(16): e(f"v_accvgpr_write_b32 {a(aRES+i)}, {v(A0+i)}")
    e(k.publish('xst', sX2))
    e(after_bar)

def xchg_setup(k, R_EX, pxor, stage, final):
    r = [f"s_xor_b32 {sA}, {sW4K}, {pxor*4096}", f"s_add_u32 {sA}, {sA}, {R_EX}", f"v_add_u32_e32 {v(TMP)}, {sA}, {vL16}",
         f"s_add_u32 {sA}, {sW4K}, {R_EX}", f"v_add_u32_e32 {v(TMP+1)}, {sA}, {vL16}",
         f"v_and_b32_e32 {v(TMP+2)}, 31, v0", f"v_lshrrev_b32_e32 {v(TMP+3)}, 5, v0",
         f"s_lshl_b32 {sB}, {sC}, 1", f"s_add_u32 {sB}, {sB}, {sFT}"]
    if final:
        r += [f"v_lshlrev_b32_e32 {v(TMP+2)}, 10, {v(TMP+2)}", f"v_lshl_add_u32 {v(TMP+2)}, {v(TMP+3)}, 4, {v(TMP+2)}",
              f"s_lshl_b32 {sA}, {sTB2}, 15", f"s_lshl_b32 {sB}, {sB}, 6", f"s_add_u32 {sX0}, {sA}, {sB}"]
    else:
        r += [f"v_lshlrev_b32_e32 {v(TMP+2)}, 4, {v(TMP+2)}", f"v_lshl_add_u32 {v(TMP+2)}, {v(TMP+3)}, 2, {v(TMP+2)}",
              f"s_lshl_b32 {sA}, {sTB2}, 15", f"s_lshl_b32 {sX0}, {sB}, 11", f"s_add_u32 {sX0}, {sX0}, {sA}", f"s_add_u32 {sX0}, {sX0}, {WS_XF + stage*0x200000}",
              f"s_lshl_b32 {sA}, {sTB2}, 7", f"s_lshl_b32 {sX2}, {sB}, 2", f"s_add_u32 {sX2}, {sX2}, {sA}", f"s_add_u32 {sX2}, {sX2}, {WS_FX + stage*0x2000}",
              f"s_lshl_b32 {sA}, {sTB2}, 12", f"s_lshl_b32 {sX1}, {sC}, 9", f"s_add_u32 {sX1}, {sX1}, {sA}", f"s_lshl_b32 {sA}, {sFT}, 3", f"s_add_u32 {sX1}, {sX1}, {sA}",
              f"s_add_u32 {sX1}, {sX1}, {WS_ST + stage*0x40000}"]
    for i in range(16): r.append(f"v_accvgpr_read_b32 {v(ACC[0]+i)}, {a(aRES+i)}")
    return r

def a2_phase(k, L, WOB, pre_poll, fill1, fill2, vis, after):
    e = k.e
    R_WO = WOB * BLK
    A0, A1 = ACC[0], ACC[1]
    e(xchg_setup(k, R_WO, 1, 2*L, False))
    t0 = v(TMP+6)
    e(f"v_bfe_u32 {t0}, v0, 2, 2", f"v_lshlrev_b32_e32 {v(TMP+4)}, 6, {t0}", f"v_lshrrev_b32_e32 {t0}, 5, v0", f"v_lshl_add_u32 {v(TMP+4)}, {t0}, 10, {v(TMP+4)}",
      f"v_bfe_u32 {t0}, v0, 4, 1", f"v_lshl_add_u32 {v(TMP+4)}, {t0}, 5, {v(TMP+4)}", f"v_and_b32_e32 {t0}, 3, v0", f"v_lshl_add_u32 {v(TMP+4)}, {t0}, 3, {v(TMP+4)}",
      f"s_mul_i32 {sA}, {sFT}, {32768 + 512}", f"s_add_u32 {sA}, {sA}, {R_WO}", f"v_add_u32_e32 {v(TMP+4)}, {sA}, {v(TMP+4)}", f"v_xor_b32_e32 {v(TMP+5)}, 0x200, {v(TMP+4)}")
    def rd(i):
        b = AB + 8*(i % 4)
        return k.rdtr(b, 'v', i*2048, 256, [v(TMP+5)]) + k.rdtr(b+4, 'v', i*2048, 256, [v(TMP+4)])
    LA = 3
    for i in range(LA): e(rd(i))
    e(f"v_and_b32_e32 {vPA}, 7, v0", f"v_lshlrev_b32_e32 {vPA}, 2, {vPA}",
      f"s_lshl_b32 {sA}, {sTB2}, 7", f"s_lshl_b32 {sB}, {sFT}, 5", f"s_add_u32 {sA}, {sA}, {sB}", f"s_add_u32 {sX3}, {sA}, {WS_FO + L*0x2000}",
      f"s_lshl_b32 {sA}, {sTB2}, 15", f"s_lshl_b32 {sB}, {sFT}, 14", f"s_add_u32 {sA}, {sA}, {sB}", f"s_add_u32 {sD}, {sA}, {WS_OF + L*0x200000}")
    e(pre_poll)
    k.poll(sX3)
    k.stamp("o_got")
    for j in range(4):
        if j: e(f"s_add_u32 {sD}, {sD}, 4096")
        for i in range(4): e(f"buffer_load_dwordx4 {v(X+(4*j+i)*4,4)}, {vL16}, {WS}, {sD} offen offset:{i*1024}")
    def half(lo, hi):
        bb = []
        for i in range(lo, hi):
            b = AB + 8*(i % 4)
            r = rd(i+LA) if i + LA < 16 else []
            bb.append([mf(A1, v(b, 4), v(X+4*i, 4), i > 0)] + r[:2])
            bb.append([mf(A0, v(b+4, 4), v(X+4*i, 4), True)] + r[2:])
        return bb
    e(interleave(half(0, 8), fill1))
    e("s_barrier")
    e(interleave(half(8, 16), fill2))
    k.stamp("a2_end")
    xchg_epilogue(k, R_WO, 1, 2*L, vis, after, False)
    k.stamp("x1_pub")

def xload_setup(k, stage):
    return [f"v_and_b32_e32 {vPA}, 15, v0", f"v_lshlrev_b32_e32 {vPA}, 2, {vPA}",
            f"s_lshl_b32 {sA}, {sTB1}, 7", f"s_add_u32 {sX3}, {sA}, {WS_FX + stage*0x2000}",
            f"s_lshl_b32 {sA}, {sTB1}, 15", f"s_add_u32 {sD}, {sA}, {WS_XF + stage*0x200000}",
            f"s_lshl_b32 {sA}, {sTB1}, 12", f"s_add_u32 {sX1}, {sA}, {WS_ST + stage*0x40000}",
            f"v_and_b32_e32 v4, 31, v0", f"v_lshrrev_b32_e32 {v(TMP)}, 5, v0", f"v_lshlrev_b32_e32 v4, 4, v4", f"v_lshl_add_u32 v4, {v(TMP)}, 11, v4"]
def xloads():
    r = []
    for s in range(32):
        ins = f"buffer_load_dwordx4 {v(X+4*s,4)}, {vL16}, {WS}, {sD} offen offset:{(s%4)*1024}"
        r.append([f"s_add_u32 {sD}, {sD}, 4096", ins] if (s % 4 == 0 and s) else ins)
    return r
def statloads(): return [f"buffer_load_dwordx4 {v(TMP+4*i,4)}, v4, {WS}, {sX1} offen offset:{i*512}" for i in range(4)]
def statmath(k, gate):
    r = []
    for step in (8, 4, 2):
        for i in range(step): r.append(f"v_add_f32_e32 {v(TMP+i)}, {v(TMP+i)}, {v(TMP+i+step)}")
    return r + ln_finish(k, v(TMP), v(TMP+1), v(TMP+2), v(TMP+3), gate)

def csb_build(k):
    e = k.e
    T = ACC[2]
    e(f"v_lshlrev_b32_e32 {vPA}, 2, v0", f"s_lshl_b32 {sA}, {sN}, 8", f"s_add_u32 {sX3}, {sA}, {WS_FR}")
    k.poll(sX3)
    e(f"s_lshl_b32 {sA}, {sN}, 14", f"s_add_u32 {sA}, {sA}, {sW1K}", f"s_add_u32 {sA}, {sA}, {WS_CSP}")
    for q in range(4):
        if q: e(f"s_add_u32 {sA}, {sA}, 4096")
        e(f"buffer_load_dwordx4 {v(T+4*q,4)}, {vL16}, {WS}, {sA} offen")
def csb_finish(k):
    T = ACC[2]
    r = []
    for step in (8, 4, 2):
        for i in range(0, step, 2): r.append(f"v_pk_add_f32 {v(T+i,2)}, {v(T+i,2)}, {v(T+i+step,2)}")
    r += [f"v_add_f32_e32 {v(T)}, {v(T)}, {v(T+1)}"] + hilo_A(k, T+2, v(T), v(T+1))
    r += [f"s_lshl_b32 {sA}, {sW}, 9", f"s_add_u32 {sA}, {sA}, {L_CSB}", f"v_lshl_add_u32 {v(T+4)}, v0, 3, {sA}", Ins(f"ds_write_b64 {v(T+4)}, {v(T+2,2)}", tag='w')]
    return r

def glu_epi(acc, tile, sOff):
    r = []
    for half in range(2):
        idx = range(4*half, 4*half+4)
        r += [f"v_mul_f32_e32 {v(acc+i)}, {vS}, {v(acc+i)}" for i in idx]
        r += [f"v_exp_f32_e32 {v(acc+i)}, {v(acc+i)}" for i in idx]
        r += [f"v_fma_f32 {v(acc+i)}, {v(acc+i)}, {vA}, {vA}" for i in idx]
        r += [f"v_rcp_f32_e32 {v(acc+i)}, {v(acc+i)}" for i in idx]
        r += [f"v_mul_f32_e32 {v(acc+i)}, {v(acc+8+i)}, {v(acc+i)}" for i in idx]
        r += [f"v_cvt_pk_bf16_f32 {v(acc+2*half+j)}, {v(acc+4*half+2*j)}, {v(acc+4*half+2*j+1)}" for j in range(2)]
    r.append([f"s_add_u32 {sA}, {sOff}, {tile*32768}", Ins(f"buffer_store_dwordx4 {v(acc,4)}, {vL16}, {WS}, {sA} offen", tag=f'hst{tile}')])
    return r

def hpoll_issue(soff): return [Ins(f"buffer_load_dword {v(TMP+15)}, {vPA}, {WS}, {soff} offen sc1", tag='hp')]
def hpoll_check(k, soff):
    Ls = k.lab("L_spin"); Lb = k.lab("L_back")
    k.tail += [f"{Ls}:", f"s_add_u32 {sTO}, {sTO}, 1", "s_cbranch_scc1 L_abort",
               f"buffer_load_dword {v(TMP+15)}, {vPA}, {WS}, {soff} offen sc1", "s_waitcnt vmcnt(0)",
               f"v_cmp_ne_u32_e32 vcc, {sT}, {v(TMP+15)}", f"s_cbranch_vccnz {Ls}", f"s_branch {Lb}"]
    return [f"v_cmp_ne_u32_e32 vcc, {sT}, {v(TMP+15)}", f"s_cbranch_vccnz {Ls}", f"{Lb}:"]

def b1_phase(k, L, gblk, hblk, pre_poll, extra):
    e = k.e
    e(xload_setup(k, 2*L))
    e(f"s_lshl_b32 {sA}, {sRB}, 1", f"s_add_u32 {sA}, {sA}, {sHI}",
      f"s_mul_i32 {sX0}, {sA}, 229376", f"s_lshl_b32 {sB}, {sC}, 12", f"s_add_u32 {sX0}, {sX0}, {sB}",
      f"s_lshr_b32 {sB}, {sN}, 3", f"s_lshl_b32 {sB}, {sB}, 1", f"s_add_u32 {sB}, {sB}, {sFT}", f"s_lshl_b32 {sB}, {sB}, 10",
      f"s_add_u32 {sX0}, {sX0}, {sB}", f"s_add_u32 {sX0}, {sX0}, {WS_HF + L*0x700000}",
      f"s_lshl_b32 {sX2}, {sA}, 7", f"s_lshl_b32 {sB}, {sFT}, 6", f"s_add_u32 {sX2}, {sX2}, {sB}", f"s_lshl_b32 {sB}, {sN}, 2", f"s_add_u32 {sX2}, {sX2}, {sB}",
      f"s_add_u32 {sX2}, {sX2}, {WS_FH + L*0x4000}",
      f"s_lshr_b32 {sA}, {sTB2}, 1",
      f"s_mul_i32 {sGB['h']}, {sA}, 229376", f"s_add_u32 {sGB['h']}, {sGB['h']}, {sW4K}", f"s_add_u32 {sGB['h']}, {sGB['h']}, {WS_HF + L*0x700000}",
      f"s_lshl_b32 s86, {sA}, 7", f"s_add_u32 s86, s86, {WS_FH + L*0x4000}", f"s_add_u32 s87, s86, 0x1000", f"s_add_u32 s88, {sX2}, 0x1000",
      f"v_and_b32_e32 v5, 31, v0", f"v_lshlrev_b32_e32 v5, 3, v5", f"v_add_u32_e32 v5, {L_CSB}, v5")
    LA, WG = 7, 4
    def uaddr(u): return gblk[u // 16]*BLK + (u % 16)*1024
    def rd(u): return Ins(k.rd128(v(AB + 4*(u % 8), 4), uaddr(u)), tag=f"r{u}")
    def tk(u): return (u % 3, u // 3) if u < 96 else (3 + (u-96)//32, (u-96) % 32)
    acc_of = lambda t: ACC[t % 4]
    csr = lambda t: TMP + 6 + 2*(t % 4)
    for u in range(LA): e(rd(u))
    e(pre_poll)
    k.poll(sX3)
    k.stamp("x1_got")
    xl = xloads()
    NX0 = 10
    e(xl[:NX0])
    e(f"v_and_b32_e32 {vPA}, 31, v0", f"v_lshlrev_b32_e32 {vPA}, 2, {vPA}")
    def bbone(lo, hi):
        bb = []
        for u in range(lo, hi):
            t, ks = tk(u)
            g = []
            if u >= 96 and ks == 0:
                if t == 3:
                    for t2 in range(3): bb.append([mf(acc_of(t2), v(csr(t2), 2), v(vM, 2), True, "32x32x8")])
                bb.append([mf(acc_of(t), v(csr(t), 2), v(vM, 2), False, "32x32x8")])
            if u % WG == 0: g.append(Wait('lgkm', f"r{min(u+WG-1, 223)}"))
            g.append(mf(acc_of(t), v(AB + 4*(u % 8), 4), v(X + 4*ks, 4), u >= 3))
            if u + LA < 224: g.append(rd(u + LA))
            bb.append(g)
        return bb
    csrd = lambda t: f"ds_read_b64 {v(csr(t),2)}, v5 offset:{t*256}"
    E = [glu_epi(acc_of(t), t, sX0) for t in range(7)]
    hE = len(E[0]) // 2
    gd = lambda gi: grp_dma('g', gi, gblk[gi])
    hd = lambda gi: grp_dma('h', gi, hblk[gi])
    streams = {
        0: [(xl[NX0:24] + statloads(), 0, 32)],
        1: [(xl[24:], 0, 16), (statmath(k, True), 8, 32), (gd(8) + gd(9), 16, 32)],
        2: [(gd(10) + gd(11) + gd(12), 0, 32), ([csrd(t) for t in range(4)], 20, 28)],
        3: [(E[0] + E[1][:hE], 5, 36), (gd(13), 0, 8), ([csrd(4)], 20, 21)],
        4: [(E[1][hE:] + E[2], 0, 33), ([csrd(5)], 20, 21)],
        5: [(E[3] + E[4][:hE], 0, 33), ([csrd(6)], 20, 21), ([k.publish(['hst0', 'hst1', 'hst2'], sX2)], 10, 11), (hpoll_issue("s86"), 24, 25)],
        6: [(E[4][hE:] + E[5], 3, 33), ([hpoll_check(k, "s86")], 1, 2), (hd(0) + hd(1) + hd(2) + hd(3) + hd(4), 2, 33)],
    }
    vis = {1: ['g3', 'g4'], 2: ['g5', 'g6'], 3: ['g7', 'g8'], 4: ['g9', 'g10'], 5: ['g11', 'g12'], 6: ['g13']}
    for j in range(7):
        if j: e(k.barrier(vm=vis[j], lgkm=False))
        e(interleave(bbone(32*j, 32*j+32), streams[j] + extra.get(j, [])))
        if j in (2, 4): k.stamp(f"b1_i{j}")
    k.stamp("b1_mf_end")
    e(hd(5))
    e(E[6])
    k.stamp("b1_end")

def b2_phase(k, L, hblk, exblk, extra, after, final):
    e = k.e
    A0, A1 = ACC[0], ACC[1]
    BB = X; NB = 8
    bo = [X+64, X+65, X+66]; bt = [X+67, X+68, X+69]
    e(f"s_mul_i32 {sA}, {sHI}, 3072", f"s_lshl_b32 {sB}, {sHI}, 10", f"s_add_u32 {sB}, {sB}, 1024")
    for j in range(3): e(f"v_add_u32_e32 {v(bo[j])}, {sA}, {vB[j]}", f"v_add_u32_e32 {v(bt[j])}, {sB}, {vB[j]}")
    pub = k.publish(['hst3', 'hst4', 'hst5', 'hst6'], "s88")
    e(xchg_setup(k, exblk*BLK, 2, 2*L+1, final))
    LA = 3
    def rd(i):
        ad = hblk[i // 4]*BLK + (i % 4)*4096
        b = BB + 8*(i % NB)
        return [Ins(k.rd128(v(b, 4), ad, [v(x) for x in bt]), tag=f"r{i}"), Ins(k.rd128(v(b+4, 4), ad, [v(x) for x in bo]), tag=f"r{i}")]
    e(k.barrier(vm=['h0', 'h1', 'h2'], lgkm=False))
    for i in range(LA): e(rd(i))
    e(pub)
    hd = lambda gi: grp_dma('h', gi, hblk[gi])
    def bbone(lo, hi):
        bb = []
        for i in range(lo, hi):
            b = BB + 8*(i % NB)
            r = rd(i+LA) if i + LA < 56 else [[], []]
            bb.append([Wait('lgkm', f"r{i}"), mf(A1, a(4*i, 4), v(b, 4), i > 0), r[0]])
            bb.append([mf(A0, a(4*i, 4), v(b+4, 4), True), r[1]])
        return [[y for y in g if y != []] for g in bb]
    streams = {
        0: [(hpoll_issue("s87"), 10, 11)],
        1: [([hpoll_check(k, "s87")], 2, 3), (hd(6) + hd(7) + hd(8) + hd(9), 3, 16)],
        2: [(hd(10) + hd(11) + hd(12), 0, 16)],
        3: [(hd(13), 0, 8)],
        4: [], 5: [], 6: []}
    vis = {1: ['h3', 'h4'], 2: ['h5', 'h6'], 3: ['h7', 'h8'], 4: ['h9', 'h10'], 5: ['h11', 'h12'], 6: ['h13']}
    for t in range(7):
        if t: e(k.barrier(vm=vis[t], lgkm=False))
        e(interleave(bbone(8*t, 8*t+8), streams[t] + extra.get(t, [])))
    k.stamp("b2_end")
    xchg_epilogue(k, exblk*BLK, 2, 2*L+1, after[0], after[1], final)
    k.stamp("x2_pub")

def wa1_addr(t0):
    return [f"v_lshrrev_b32_e32 {t0}, 2, v0", f"v_mul_u32_u24_e32 v5, 0xc00, {t0}", f"v_and_b32_e32 {t0}, 3, v0", f"v_lshl_add_u32 v5, {t0}, 4, v5",
            f"s_mul_i32 s55, {sW}, 0xc000", f"s_lshl_b32 {sA}, {sN}, 6", f"s_add_u32 s55, s55, {sA}"]
def wkv_dma(c, R):
    return [[f"s_add_u32 m0, {sE}, {R + c*8192}", f"s_add_u32 {sDM}, s55, {c*4*49152 + 1024}",
             Ins(f"buffer_load_dwordx4 v5, {SWQKV}, {sDM} offen lds", tag=f"wkv{c}")],
            Ins(f"buffer_load_dwordx4 v5, {SWQKV}, {sDM} offen offset:1024 lds", tag=f"wkv{c}")]
def wq_dma(c, R):
    return [[f"s_add_u32 m0, {sW1K}, {R + c*4096}", f"s_add_u32 {sDM}, s55, {c*4*49152}", Ins(f"buffer_load_dwordx4 v5, {SWQKV}, {sDM} offen lds", tag="wq")]]

def a1_pass1_l2(k, R, pre_poll):
    e = k.e
    AK, AV = ACC[0], ACC[1]
    e(xload_setup(k, 1))
    e(tr_base(k, "v6", False, tmp=(v(ACC[2]), v(ACC[2]+1))))
    tb = [v(ACC[2]+2)]
    e(f"v_add_u32_e32 {tb[0]}, {R}, v6")
    def rd(s):
        b = AB + 8*(s % 4)
        return k.rdtr(b, 'v', s*2048, 512, tb) + k.rdtr(b+4, 'v', s*2048 + 1024, 512, tb)
    LA = 3
    for s in range(LA): e(rd(s))
    e(pre_poll)
    k.poll(sX3)
    k.stamp("x2_got")
    xl = xloads()
    NX0 = 12
    e(xl[:NX0])
    bb = []
    for s in range(32):
        b = AB + 8*(s % 4)
        r = rd(s+LA) if s + LA < 32 else []
        bb.append([mf(AK, v(b, 4), v(X+4*s, 4), s > 0)] + r[:2])
        bb.append([mf(AV, v(b+4, 4), v(X+4*s, 4), s > 0)] + r[2:])
    e(interleave(bb, [(xl[NX0:20] + statloads() + xl[20:], 0, 40), (statmath(k, False), 44, 62)]))
    k.stamp("p1_end")
    e(k.barrier(vm=['wq'], lgkm=False))

def flat(x):
    r = []
    for y in x:
        if isinstance(y, list): r += flat(y)
        else: r.append(y)
    return r

def build(opts):
    k = K(opts); e = k.e
    stop = opts.get('stop', 99)
    def done(n): return stop == n
    def body():
        prologue(k)
        e(f"s_lshl_b32 {sW4K}, {sW}, 12")
        a1_pass1_l1(k)
        kv_epilogue(k, 0, R_XS, repack_dma(k) + res_dma(k) + wo_addr(k, v(TMP+10)) + wo_dma(k, 0), [])
        if done(1): return
        repack_csq(k)
        e(f"v_add_u32_e32 {v(TMP+14)}, {R_Q}, v6")
        e(wd_addr(k, v(TMP+13)))
        q_phase(k, 0, lambda s: s*1024, [v(TMP+14)], 256,
                [([wd_load(i) for i in range(0, 14)], 0, 28), ([fr_flag(k)], 29, 30)],
                [wd_load(i) for i in range(14, 28)])
        if done(2): return
        gblk = [4, 5, 6, 7, 8, 2, 1, 3, 0, 4, 5, 6, 7, 8]
        hblk = [i % 9 for i in range(14)]
        gd = lambda gi: grp_dma('g', gi, gblk[gi])
        e(res_finish(k, ACC[2]))
        e(f"s_mul_i32 {sGB['g']}, {sN}, 229376", f"s_add_u32 {sGB['g']}, {sGB['g']}, {sW4K}", f"s_add_u32 {sGB['g']}, {sGB['g']}, {WS_WB1P}")
        csb_build(k)
        e(gd(0))
        d0, d1 = v(ACC[3]), v(ACC[3]+1)
        e(wd_tr_addr(k, d0, d1, (v(ACC[3]+2), v(ACC[3]+3))))
        a2_phase(k, 0, 0, [wd_tr(i, d0, d1) for i in range(0, 10)] + csb_finish(k),
                 [(gd(1) + gd(2) + gd(3), 0, 16)], [(gd(4) + gd(5), 0, 12)], ['g0', 'g1', 'g2'], gd(6) + gd(7))
        if done(3): return
        b1_phase(k, 0, gblk, hblk, [wd_tr(i, d0, d1) for i in range(10, 28)],
                 {3: [([wd_load(i) for i in range(28, 42)], 8, 36)], 4: [([wd_load(i) for i in range(42, 56)], 0, 33)]})
        if done(4):
            e(k.publish(['hst3', 'hst4', 'hst5', 'hst6'], "s88")); return
        d0, d1 = v(X+70), v(X+71)
        e(wd_tr_addr(k, d0, d1, (v(X+72), v(X+73))))
        e(wa1_addr(v(X+72)))
        RKV2, RQ2, RPHI2 = 5*BLK, 1*BLK, 3*BLK
        b2_phase(k, 0, hblk, 0,
                 {0: [([wd_tr(i, d0, d1) for i in range(28, 38)], 0, 16)], 1: [([wd_tr(i, d0, d1) for i in range(38, 42)], 0, 16)],
                  2: [([wd_tr(i, d0, d1) for i in range(42, 48)], 0, 16)], 3: [([wd_tr(i, d0, d1) for i in range(48, 56)], 0, 16), (wkv_dma(0, RKV2) + wkv_dma(1, RKV2), 8, 16)],
                  4: [(flat2([wkv_dma(c, RKV2) for c in range(2, 6)]), 0, 16)], 5: [(wkv_dma(6, RKV2) + wkv_dma(7, RKV2), 0, 16)]},
                 ([f"wkv{c}" for c in range(8)], flat2([wq_dma(c, RQ2) for c in range(8)])), False)
        if done(5): return
        gblk = [0, 3, 4, 1, 2, 7, 6, 8, 5, 0, 3, 4, 1, 2]
        gd = lambda gi: grp_dma('g', gi, gblk[gi])
        a1_pass1_l2(k, RKV2, [])
        kv_epilogue(k, 1, RPHI2, wo_addr(k, v(TMP+10)) + wo_dma(k, 5*BLK), [])
        e(f"v_add_u32_e32 {v(TMP+14)}, {RQ2}, v6", "s_barrier")
        q_phase(k, 1, lambda s: s*1024, [v(TMP+14)], 512, [(gd(0) + gd(1) + gd(2), 0, 28)], [])
        a2_phase(k, 1, 5, gd(3) + gd(4), [], [(gd(5), 0, 8)], ['g0', 'g1', 'g2'], gd(6) + gd(7))
        if done(6): return
        hblk2 = [7, 6, 8, 5, 0, 3, 4, 1, 2, 7, 6, 8, 5, 0]
        b1_phase(k, 1, gblk, hblk2, [], {})
        b2_phase(k, 1, hblk2, 3, {}, (None, None), True)
    body()
    e("s_cmp_lg_u32 s2, 0", "s_cbranch_scc1 L_fin", Ins(f"v_mov_b32_e32 {vP}, {sT}", opt=True), Ins("s_mov_b64 exec, 1", opt=True),
      Ins(f"buffer_store_dword {vP}, off, {WS}, 0", opt=True), Ins("s_mov_b64 exec, -1", opt=True), "L_fin:")
    e("L_abort:")
    if opts.get('stamps'):
        e("s_mov_b64 exec, -1", f"s_lshl_b32 {sA}, s2, 2", f"s_add_u32 {sA}, {sA}, {sW}", f"s_lshl_b32 {sA}, {sA}, 8", f"s_add_u32 {sA}, {sA}, {WS_DBG}",
          f"v_writelane_b32 {vST}, {sTO}, 63", f"v_writelane_b32 {vST}, {sSLOW}, 62",
          f"v_lshlrev_b32_e32 {vPA}, 2, v0", f"buffer_store_dword {vST}, {vPA}, {WS}, {sA} offen")
    e("L_end:", "s_endpgm")
    items = finalize(flat(k.o))
    owner = None
    for it in items:
        if it.kind == 'salu' and ('s', 'm0') in it.wr: owner = None
        if it.kind == 'vmem' and ('s', 'm0') in it.rd:
            if owner is None:
                owner = it.tag; assert 'offset:' not in it.text, it.text
            else: assert owner == it.tag and 'offset:' in it.text, (owner, it.tag, it.text)
    tail = [I(x) for x in flat(k.tail)]
    txt = to_text(items) + "\n" + to_text(tail) + "\nL_codeend:\n"
    hdr = open(os.path.join(os.path.dirname(os.path.abspath(__file__)), "header.txt")).read()
    src = hdr + f"""; @launch grid=(256,1,1) block=(256,1,1) lds=163840
.amdgcn_target "amdgcn-amd-amdhsa--gfx950"
.set CODE_LEN, {opts.get('code_len', 4096)}
.set CODE_LANES, {opts.get('code_lanes', 4)}
.set CODE_SLICE, {opts.get('code_lanes', 4) * 128}
.text
.globl {KNAME}
.p2align 8
.type {KNAME},@function
{KNAME}:
{txt}
.section .rodata,"a"
.p2align 6
.amdhsa_kernel {KNAME}
  .amdhsa_next_free_vgpr 512
  .amdhsa_next_free_sgpr 96
  .amdhsa_accum_offset 256
  .amdhsa_group_segment_fixed_size 0
  .amdhsa_kernarg_size 88
  .amdhsa_user_sgpr_count 2
  .amdhsa_user_sgpr_kernarg_segment_ptr 1
  .amdhsa_system_sgpr_workgroup_id_x 1
  .amdhsa_float_denorm_mode_32 3
.end_amdhsa_kernel
"""
    return src, k.stnames, items
def flat2(x):
    r = []
    for y in x: r += y
    return r

if __name__ == "__main__":
    import argparse, json
    ap = argparse.ArgumentParser()
    ap.add_argument("-o", default="main.s"); ap.add_argument("--stop", type=int, default=99)
    ap.add_argument("--stamps", action="store_true"); ap.add_argument("--slow", action="store_true")
    ap.add_argument("--opt", action="append", default=[])
    ar = ap.parse_args()
    opts = dict(stop=ar.stop, stamps=ar.stamps, force_slow=ar.slow)
    for kv in ar.opt:
        kk, vv = kv.split("="); opts[kk] = int(vv)
    src, names, items = build(opts)
    open(ar.o, "w").write(src)
    import subprocess, re
    subprocess.check_call(["clang", "-x", "assembler", "-target", "amdgcn-amd-amdhsa", "-mcpu=gfx950", "-c", ar.o, "-o", "kgen_tmp.o"])
    sy = subprocess.check_output(["llvm-readelf", "-s", "kgen_tmp.o"], text=True)
    val = lambda n: int(re.search(r"([0-9a-f]{16})\s+\d+\s+\w+\s+\w+\s+\w+\s+\d+\s+" + n + r"\b", sy).group(1), 16)
    clen = val("L_codeend") - val("L_pc") - 4
    opts['code_len'] = clen; opts['code_lanes'] = -(-clen // (128*128))
    src, names, items = build(opts)
    open(ar.o, "w").write(src)
    print("code bytes", val("L_codeend"))
    json.dump(names, open(ar.o + ".stamps.json", "w"))
    from collections import Counter
    print(len(items), "instrs", Counter(i.kind for i in items), "nops", sum(1 for i in items if i.op == 's_nop'))
```

```python
import sys
HDR = """; @launch grid=(256,1,1) block=({nt},1,1) lds=160000
.amdgcn_target "amdgcn-amd-amdhsa--gfx950"
.text
.globl mb_kernel
.p2align 8
.type mb_kernel,@function
mb_kernel:
    s_load_dwordx4 s[4:7], s[0:1], 0
    s_waitcnt lgkmcnt(0)
    s_mov_b32 s8, s4
    s_mov_b32 s9, s5
    s_mov_b32 s10, 0x4000000
    s_mov_b32 s11, 0x20000
    s_mov_b32 s12, s6
    s_mov_b32 s13, s7
    s_mov_b32 s14, 65536
    s_mov_b32 s15, 0x20000
    v_lshrrev_b32 v1, 6, v0
    s_nop 0
    v_readfirstlane_b32 s20, v1
    v_and_b32 v2, 63, v0          ; lane
    s_and_b32 s21, s2, 7          ; xcd
    s_lshr_b32 s22, s2, 3         ; slot 0..31
    s_lshr_b32 s23, s22, 4
    s_and_b32 s24, s22, 15        ; member
    s_lshl_b32 s25, s21, 1
    s_add_u32 s25, s25, s23       ; grp
"""
FTR = """
    s_waitcnt vmcnt(0) lgkmcnt(0)
    s_barrier
    s_memtime s[32:33]
    s_waitcnt lgkmcnt(0)
    s_sub_u32 s32, s32, s30
    v_mov_b32 v4, s32
    s_lshl_b32 s3, s2, 2
    v_mov_b32 v5, s3
    v_cmp_eq_u32 vcc, 0, v0
    s_and_saveexec_b64 s[34:35], vcc
    s_cbranch_execz L_end
    buffer_store_dword v4, v5, s[12:15], 0 offen
L_end:
    s_endpgm
.section .rodata,"a"
.p2align 6
.amdhsa_kernel mb_kernel
  .amdhsa_next_free_vgpr 512
  .amdhsa_next_free_sgpr 96
  .amdhsa_accum_offset 256
  .amdhsa_group_segment_fixed_size 0
  .amdhsa_kernarg_size 16
  .amdhsa_user_sgpr_count 2
  .amdhsa_user_sgpr_kernarg_segment_ptr 1
  .amdhsa_system_sgpr_workgroup_id_x 1
.end_amdhsa_kernel
"""
START = """
    s_waitcnt vmcnt(0) lgkmcnt(0)
    s_barrier
    s_memtime s[30:31]
    s_waitcnt lgkmcnt(0)
"""
def loadtest(seg, rowstride, tolds, nloads=32, rounds=8, colstep=None, share=True):
    o = [HDR.format(nt=256)]
    lpr = seg // 16
    o.append(f"    s_mov_b32 s40, {(1<<32)//lpr + 1 if lpr>1 else 0}")
    if lpr > 1:
        o.append("    v_mul_hi_u32 v6, v2, s40")
    else:
        o.append("    v_mov_b32 v6, v2")
    o.append(f"    v_mul_u32_u24 v7, {lpr}, v6")
    o.append("    v_sub_u32 v7, v2, v7")
    o.append(f"    s_mov_b32 s41, {rowstride}")
    o.append("    v_mul_lo_u32 v3, v6, s41")
    o.append("    v_lshl_add_u32 v3, v7, 4, v3")
    rows_per_instr = -(-64 // lpr)
    if colstep is None:
        wavestep = rows_per_instr * rowstride
        instrstep = 4 * wavestep
    else:
        wavestep = rows_per_instr * rowstride
        instrstep = colstep
    o.append(f"    s_mul_i32 s42, s20, {wavestep}")
    o.append(f"    s_mul_i32 s43, s25, {4<<20}")
    o.append("    s_add_u32 s42, s42, s43")
    if not share:
        o.append(f"    s_mul_i32 s43, s24, {seg}")
        o.append("    s_add_u32 s42, s42, s43")
    o.append("    v_add_u32 v3, s42, v3")
    o.append("    s_lshl_b32 s44, s20, 10")
    o.append(f"    s_mov_b32 s46, 0")
    o.append("L_loop:")
    o.append("    s_cmp_eq_u32 s46, 1")
    o.append("    s_cbranch_scc0 L_nostart")
    o.append(START)
    o.append("L_nostart:")
    for i in range(nloads):
        o.append(f"    s_mov_b32 s45, {i*instrstep}")
        if tolds:
            o.append(f"    s_add_u32 m0, s44, {(i%32)*4096}")
            o.append("    s_nop 0")
            o.append(f"    buffer_load_dwordx4 v3, s[8:11], s45 offen lds")
        else:
            r = 16 + (i % 32) * 4
            o.append(f"    buffer_load_dwordx4 v[{r}:{r+3}], v3, s[8:11], s45 offen")
        if i % 8 == 7:
            o.append("    s_waitcnt vmcnt(16)")
    o.append("    s_add_u32 s46, s46, 1")
    o.append(f"    s_cmp_lt_u32 s46, {rounds+1}")
    o.append("    s_cbranch_scc1 L_loop")
    o.append(FTR)
    return "\n".join(o), nloads * 4 * 1024 * rounds
def mfmatest(ntr, dma_every, gl_every, nvalu, ntrans=0, stagger=False, iters=16, body=28, bar_every=0):
    o = [HDR.format(nt=256)]
    o.append("    v_lshlrev_b32 v3, 4, v2")
    o.append(f"    s_mul_i32 s42, s20, 1024")
    o.append(f"    s_mul_i32 s43, s25, {4<<20}")
    o.append("    s_add_u32 s42, s42, s43")
    o.append("    v_add_u32 v3, s42, v3")
    o.append("    v_lshlrev_b32 v8, 3, v2")
    o.append("    s_lshl_b32 s44, s20, 10")
    o.append("    s_add_u32 s44, s44, 65536")
    for r in range(16, 256): o.append(f"    v_mov_b32 v{r}, 0")
    o.append(f"    s_mov_b32 s46, 0")
    o.append(f"    s_mov_b32 s45, 0")
    o.append("L_loop:")
    o.append("    s_cmp_eq_u32 s46, 1")
    o.append("    s_cbranch_scc0 L_nostart")
    o.append(START)
    o.append("L_nostart:")
    if stagger:
        pass
    nd = 0; ng = 0
    for i in range(body):
        acc = 128 + (i % 4) * 16
        a = 16 + (i % 8) * 4
        an = 16 + ((i + 4) % 8) * 4
        if ntr: o.append(f"    s_waitcnt lgkmcnt({min(15, 3*ntr)})")
        o.append(f"    v_mfma_f32_32x32x16_bf16 v[{acc}:{acc+15}], v[{a}:{a+3}], v[48:51], v[{acc}:{acc+15}]")
        for t in range(ntr):
            o.append(f"    ds_read_b64_tr_b16 v[{an+2*(t%2)}:{an+2*(t%2)+1}], v8 offset:{((i*ntr+t)*512) % 65536}")
        for t in range(nvalu):
            o.append(f"    v_fma_f32 v{60+t}, v{60+t}, v70, v71")
        for t in range(ntrans):
            o.append(f"    v_exp_f32 v{72+t}, v{76+t}")
        ph = i
        if dma_every and (ph % dma_every) == dma_every - 1:
            o.append(f"    s_add_u32 m0, s44, {(nd%16)*4096}")
            o.append(f"    s_add_u32 s45, s45, 4096")
            o.append(f"    s_and_b32 s45, s45, 0x3ffff")
            o.append(f"    buffer_load_dwordx4 v3, s[8:11], s45 offen lds")
            o.append(f"    s_waitcnt vmcnt(12)")
            nd += 1
        if gl_every and (ph % gl_every) == gl_every - 1:
            r = 80 + (ng % 8) * 4
            o.append(f"    s_add_u32 s45, s45, 4096")
            o.append(f"    s_and_b32 s45, s45, 0x3ffff")
            o.append(f"    buffer_load_dwordx4 v[{r}:{r+3}], v3, s[8:11], s45 offen")
            o.append(f"    s_waitcnt vmcnt(7)")
            ng += 1
        if bar_every and (ph % bar_every) == bar_every - 1:
            o.append("    s_barrier")
    o.append("    s_add_u32 s46, s46, 1")
    o.append(f"    s_cmp_lt_u32 s46, {iters+1}")
    o.append("    s_cbranch_scc1 L_loop")
    o.append(FTR)
    return "\n".join(o), body * iters
tests = {}
tests["reg_lin"] = ("bw", loadtest(1024, 1024, False))
tests["lds_lin"] = ("bw", loadtest(1024, 1024, True))
tests["reg_x32"] = ("bw", loadtest(32, 1024, False, colstep=32))
tests["reg_x64"] = ("bw", loadtest(64, 1024, False, colstep=64, nloads=16))
tests["lds_seg256_s3584"] = ("bw", loadtest(256, 3584, True, share=False))
tests["lds_seg128_s3584"] = ("bw", loadtest(128, 3584, True, nloads=16, share=False))
tests["lds_seg128_s1024"] = ("bw", loadtest(128, 1024, True, nloads=32, share=False))
tests["lds_seg64_s3072"] = ("bw", loadtest(64, 3072, True, nloads=16, share=False))
tests["lds_seg32_s3584"] = ("bw", loadtest(32, 3584, True, nloads=8, share=False))
tests["lds_seg96_s3584"] = ("bw", loadtest(96, 3584, True, nloads=16, share=False))
tests["lds_seg224_s3584"] = ("bw", loadtest(224, 3584, True, nloads=32, share=False))
tests["mfma_bare"] = ("mf", mfmatest(0, 0, 0, 0))
tests["mfma_tr2"] = ("mf", mfmatest(2, 0, 0, 0))
tests["mfma_tr2_v2"] = ("mf", mfmatest(2, 0, 0, 2))
tests["mfma_tr2_v3"] = ("mf", mfmatest(2, 0, 0, 3))
tests["mfma_tr2_v2t1"] = ("mf", mfmatest(2, 0, 0, 2, 1))
tests["mfma_dma4"] = ("mf", mfmatest(0, 4, 0, 0))
tests["mfma_tr2_dma4"] = ("mf", mfmatest(2, 4, 0, 0))
tests["mfma_tr2_dma2"] = ("mf", mfmatest(2, 2, 0, 0))
tests["mfma_tr2_gl4"] = ("mf", mfmatest(2, 0, 4, 0))
tests["mfma_tr2_gl2"] = ("mf", mfmatest(2, 0, 2, 0))
tests["mfma_tr2_dma4_v2"] = ("mf", mfmatest(2, 4, 0, 2))
tests["mfma_tr2_dma4_bar14"] = ("mf", mfmatest(2, 4, 0, 0, bar_every=14))
tests["mfma_tr2_dma7_gl7"] = ("mf", mfmatest(2, 7, 7, 0))
if __name__ == "__main__":
    sys.path.insert(0, "exp")
    if len(sys.argv) > 1 and sys.argv[1] == "gen":
        for n, (kind, (src, q)) in tests.items():
            open(f"t_{n}.s", "w").write(src)
        sys.exit(0)
    from runlib import *
    data = DeviceBuffer(64 << 20); out = DeviceBuffer(65536)
    memset(data, 0)
    for n, (kind, (src, q)) in tests.items():
        p = f"t_{n}.s"; open(p, "w").write(src)
        co = assemble(p, "mb_kernel", 2)
        k = AsmKernel(co, "mb_kernel")
        res = []
        for it in range(3):
            memset(out, 0)
            k.launch((256,1,1), (256,1,1), pack_ptr_kernargs([data.ptr, out.ptr]), 160000)
            sync()
            c = out.to_numpy(np.uint32, (256,))
            res.append(np.median(c))
        if kind == "bw": print(f"{n:28s} clks {res}  B/clk {q/res[-1]:.1f}")
        else: print(f"{n:28s} clks {res}  clk/mfma {res[-1]/q:.2f}")
        k.unload()
```

```python
import sys
from mb2_gen import HDR
FT = """
    v_lshlrev_b32 v8, 2, v2
    s_lshl_b32 s3, s2, 8
    s_cmp_lg_u32 s20, 0
    s_cbranch_scc1 L_end
    buffer_store_dword v7, v8, s[12:15], s3 offen
L_end:
    s_endpgm
.section .rodata,"a"
.p2align 6
.amdhsa_kernel mb_kernel
  .amdhsa_next_free_vgpr 512
  .amdhsa_next_free_sgpr 96
  .amdhsa_accum_offset 256
  .amdhsa_group_segment_fixed_size 0
  .amdhsa_kernarg_size 16
  .amdhsa_user_sgpr_count 2
  .amdhsa_user_sgpr_kernarg_segment_ptr 1
  .amdhsa_system_sgpr_workgroup_id_x 1
.end_amdhsa_kernel
"""
def t(shape, lds, duty=0, nseg=30, per=64):
    o = [HDR.format(nt=256)]
    o.append("    v_lshlrev_b32 v3, 4, v0")
    o.append("    v_lshlrev_b32 v9, 4, v2")
    for i in range(40):
        o.append(f"    s_mov_b32 s45, {i*4096}")
        o.append(f"    buffer_load_dwordx4 v[{80+4*i}:{83+4*i}], v3, s[8:11], s45 offen")
    o.append("    s_lshl_b32 s44, s20, 10")
    for i in range(16):
        o.append(f"    s_mov_b32 s45, {(1<<20) + i*4096}")
        o.append(f"    s_add_u32 m0, s44, {i*4096}")
        o.append("    s_nop 0")
        o.append(f"    buffer_load_dwordx4 v3, s[8:11], s45 offen lds")
    for r in range(16, 80): o.append(f"    v_mov_b32 v{r}, 0")
    o.append("    s_waitcnt vmcnt(0)")
    o.append("    s_barrier")
    o.append("    s_mov_b32 s46, 0")
    o.append("L_loop:")
    o.append("    s_memtime s[50:51]")
    o.append("    s_memrealtime s[52:53]")
    o.append("    s_waitcnt lgkmcnt(0)")
    o.append("    s_mov_b32 m0, s46")
    o.append("    v_writelane_b32 v7, s50, m0")
    o.append("    s_add_u32 m0, s46, 32")
    o.append("    v_writelane_b32 v7, s52, m0")
    for i in range(per):
        a = 80 + (i % 8)*4; an = 80 + ((i+6) % 8)*4; b = 112 + (i % 32)*4
        if shape == 32:
            acc = 16 + (i % 4)*16
            if lds and i % 2 == 0: o.append("    s_waitcnt lgkmcnt(4)")
            o.append(f"    v_mfma_f32_32x32x16_bf16 v[{acc}:{acc+15}], v[{a}:{a+3}], v[{b}:{b+3}], v[{acc}:{acc+15}]")
        else:
            b = 112 + ((i >> 1) % 16)*8
            if lds and i % 2 == 0: o.append("    s_waitcnt lgkmcnt(4)")
            for j in range(2):
                acc = 16 + ((i % 8)*2 + j)*4
                o.append(f"    v_mfma_f32_16x16x32_bf16 v[{acc}:{acc+3}], v[{a}:{a+3}], v[{b+4*j}:{b+4*j+3}], v[{acc}:{acc+3}]")
        if lds: o.append(f"    ds_read_b128 v[{an}:{an+3}], v9 offset:{(i*1024) % 65536}")
        if duty and i % duty == duty - 1: o.append("    s_nop 15")
    o.append("    s_add_u32 s46, s46, 1")
    o.append(f"    s_cmp_lt_u32 s46, {nseg}")
    o.append("    s_cbranch_scc1 L_loop")
    o.append(FT)
    return "\n".join(o)
tests = {"m32": t(32, 0), "m16": t(16, 0), "m32lds": t(32, 1), "m16lds": t(16, 1), "m32lds_duty4": t(32, 1, 4), "m32lds_duty2": t(32, 1, 2)}
if __name__ == "__main__":
    sys.path.insert(0, "exp")
    if len(sys.argv) > 1 and sys.argv[1] == "gen":
        for i, (n, src) in enumerate(tests.items()):
            open(f"t_{i}.s", "w").write(src)
        sys.exit(0)
    from runlib import *
    rnd = f32_to_bf16(np.random.randn(1 << 21).astype(np.float32))
    data = DeviceBuffer(64 << 20); out = DeviceBuffer(65536); big = DeviceBuffer(512 << 20)
    hip_check(hip.hipMemcpy(data._ptr, rnd.ctypes.data_as(ctypes.c_void_p), rnd.nbytes, 1))
    for i, (n, src) in enumerate(tests.items()):
        p = f"t_{i}.s"; open(p, "w").write(src)
        co = assemble(p, "mb_kernel", 2)
        k = AsmKernel(co, "mb_kernel")
        for it in range(3):
            memset(out, 0); memset(big, it); sync()
            k.launch((256,1,1), (256,1,1), pack_ptr_kernargs([data.ptr, out.ptr]), 160000); sync()
        c = out.to_numpy(np.uint32, (256, 64)).astype(np.int64)
        dc = np.diff(c[:, :30], axis=1); dr = np.diff(c[:, 32:62], axis=1)
        print(f"{n:14s} clk/seg {int(np.median(dc))}  ns/seg:", [int(x) for x in dr.mean(0)*10], " total us", round(float(dr.sum(1).mean())/100, 2), flush=True)
        k.unload()
```
